```python
import torch

def _softmax(x, axis=-1):
    return torch.softmax(x, dim=axis)
def _gelu(x):
    return torch.nn.functional.gelu(x, approximate="tanh")
def _silu(x):
    return torch.nn.functional.silu(x)
def _sigmoid(x):
    return torch.sigmoid(x)
def _layernorm(x, axis=-1, eps=1e-5):
    m = x.mean(dim=axis, keepdim=True)
    v = x.var(dim=axis, keepdim=True, unbiased=False)
    return (x - m) / torch.sqrt(v + eps)
def _scatter_add(tgt, idx, src, axis=0):
    return tgt.clone().index_add_(axis, idx, src)
def _segment_sum(src, seg, n):
    out = torch.zeros((n,) + src.shape[1:], dtype=src.dtype)
    return out.index_add_(0, seg, src)
def _pad(x, pw):
    flat = tuple(v for pair in reversed(pw) for v in pair)
    return torch.nn.functional.pad(x, flat)

kernel_name = 'gated_mix__spectral_fnet__geglu_ffn__prompt'

def setup_inputs():

    _w = (lambda a: (lambda t: t.to(torch.bfloat16) if t.is_floating_point() else t)(torch.as_tensor(a)))
    def _A_setup():
        B, S, D = 1, 2048, 1024
        ns = torch.arange(S)[:, None] * torch.arange(S)[None, :]
        nd = torch.arange(D)[:, None] * torch.arange(D)[None, :]
        Ws_re = torch.cos(-2.0 * torch.pi * ns / S).to(float)
        Ws_im = torch.sin(-2.0 * torch.pi * ns / S).to(float)
        Wd_re = torch.cos(-2.0 * torch.pi * nd / D).to(float)
        Wd_im = torch.sin(-2.0 * torch.pi * nd / D).to(float)
        return {
            "x": _w((lambda *s: torch.randn(*s, dtype=torch.bfloat16) * 0.05)(B, S, D)),
            "dft_seq_re": _w(Ws_re),
            "dft_seq_im": _w(Ws_im),
            "dft_hid_re": _w(Wd_re),
            "dft_hid_im": _w(Wd_im),
        }
    _A_in = _A_setup()

    def _B_setup():
        B, S, D, F = 1, 2048, 1024, 3584
        return {
            "x": _w((lambda *s: torch.randn(*s, dtype=torch.bfloat16) * 0.05)(B, S, D)),
            "w_gate": _w((lambda *s: torch.randn(*s, dtype=torch.bfloat16) * 0.4)(D, F)),
            "w_up": _w((lambda *s: torch.randn(*s, dtype=torch.bfloat16) * 0.4)(D, F)),
            "w_down": _w((lambda *s: torch.randn(*s, dtype=torch.bfloat16) * 0.4)(F, D)),
        }
    _B_in = _B_setup()

    return {
        "A_x": _A_in["x"],
        "A_dft_seq_re": _A_in["dft_seq_re"],
        "A_dft_seq_im": _A_in["dft_seq_im"],
        "A_dft_hid_re": _A_in["dft_hid_re"],
        "A_dft_hid_im": _A_in["dft_hid_im"],
        "B_x": _B_in["x"],
        "B_w_gate": _B_in["w_gate"],
        "B_w_up": _B_in["w_up"],
        "B_w_down": _B_in["w_down"],
        "gate_w": _w((lambda *s: torch.randn(*s, dtype=torch.bfloat16) * 0.05)(1024) * 16.0),
    }

def reference(A_x, A_dft_seq_re, A_dft_seq_im, A_dft_hid_re, A_dft_hid_im, B_x, B_w_gate, B_w_up, B_w_down, gate_w):
    def _A_ref(x, dft_seq_re, dft_seq_im, dft_hid_re, dft_hid_im):
        a = torch.einsum("bsd,ed->bse", x, dft_hid_re)
        b = torch.einsum("bsd,ed->bse", x, dft_hid_im)
        y = torch.einsum("ts,bse->bte", dft_seq_re, a) - torch.einsum("ts,bse->bte", dft_seq_im, b)
        return y

    def _B_ref(x, w_gate, w_up, w_down):
        return (_gelu(x @ w_gate) * (x @ w_up)) @ w_down

    x = A_x
    g = _sigmoid((x * gate_w).sum(-1, keepdims=True))
    a = _A_ref(x, A_dft_seq_re, A_dft_seq_im, A_dft_hid_re, A_dft_hid_im)
    b = _B_ref(x, B_w_gate, B_w_up, B_w_down)
    return g * a + (1 - g) * b
```

```python
import struct
S, D, F = 2048, 1024, 3584
WS_H   = 0x0000000
WS_Z   = 0x1000000
WS_G   = 0x1500000
WS_YT  = 0x1600000
WS_XB  = 0x1B00000
WS_FL  = 0x2400000
WS_SIZE = 0x2500000
def f2u(x): return struct.unpack("<I", struct.pack("<f", x))[0]
def hx(x): return "0x%08x" % (x & 0xffffffff)
class Asm:
    def __init__(self): self.L = []
    def __call__(self, s):
        for l in s.split("\n"):
            l = l.strip()
            if l: self.L.append(("" if l.endswith(":") else "    ") + l)
    def text(self): return "\n".join(self.L) + "\n"
def vr(a, n=1): return f"v{a}" if n == 1 else f"v[{a}:{a+n-1}]"
def sr(a, n=1): return f"s{a}" if n == 1 else f"s[{a}:{a+n-1}]"
def kd(name, vgpr, sgpr=96, accum=None):
    accum = accum or ((vgpr + 3) // 4 * 4)
    return f""".p2align 6
.amdhsa_kernel {name}
  .amdhsa_next_free_vgpr {vgpr}
  .amdhsa_next_free_sgpr {sgpr}
  .amdhsa_accum_offset {accum}
  .amdhsa_group_segment_fixed_size 0
  .amdhsa_kernarg_size 104
  .amdhsa_user_sgpr_count 2
  .amdhsa_user_sgpr_kernarg_segment_ptr 1
  .amdhsa_system_sgpr_workgroup_id_x 1
.end_amdhsa_kernel
"""
def srd(o, d, lo, hi, nbytes):
    o(f"s_mov_b32 s{d}, s{lo}\ns_and_b32 s{d+1}, s{hi}, 0xffff\ns_mov_b32 s{d+2}, {hx(nbytes)}\ns_mov_b32 s{d+3}, 0x20000")
```

```python
from common import *
import math

ACC = 128
def acc(mt, mat): return ACC + (mt * 2 + mat) * 16
SETS = [dict(X=64, W=80), dict(X=88, W=104)]
VAR = 112
VBR = 116
VBR0 = 117
VAD = 118
VBD = 122
SA, SB0, SB1, SWS, SM1, SM2 = 24, 28, 32, 36, 40, 44
sW, sMB_, sNB, sDFT, sSTR, sKA, sKB, sSTEP, sMA, sC, sN, sWB = 48, 49, 50, 51, 52, 53, 54, 55, 56, 57, 58, 59

def reads(o_list, st, ks):
    s = SETS[st]; r = []
    def w(mat, rd): return f"ds_read_b64_tr_b16 {vr(s['W']+mat*4+rd*2,2)}, v{VBR} offset:{ks*8192+mat*2048+rd*1024}"
    def x(mt): return f"ds_read_b128 {vr(s['X']+mt*4,4)}, v{VAR+ks} offset:{mt*4096}"
    return [w(0,0), w(0,1), x(0), x(1), w(1,0), w(1,1), x(2), x(3)]

def mfmas(st, dft):
    s = SETS[st]; r = []
    for (mat, mt) in [(0,0),(0,1),(1,0),(1,1),(0,2),(1,2),(0,3),(1,3)]:
        W = vr(s['W']+mat*4,4); X = vr(s['X']+mt*4,4); A = vr(acc(mt,mat),16)
        a, b = (X, W) if dft else (W, X)
        r.append(f"v_mfma_f32_32x32x16_bf16 {A}, {a}, {b}, {A}")
    return r

def dmaA(j): return f"buffer_load_dwordx4 v{VAD+j}, s[{SA}:{SA+3}], s{sKA} offen offset:{j*1024} lds"
def dmaB(j):
    srdn = SB0 if j < 2 else SB1
    return f"buffer_load_dwordx4 v{VBD+(j&1)}, s[{srdn}:{srdn+3}], s{sKB} offen offset:{j*1024} lds"

def cyc3(o, d, s, t):
    o(f"s_add_u32 s{t}, s{s}, 32768\ns_cmp_ge_u32 s{t}, 98304\ns_cselect_b32 s{d}, 0, s{t}")

def mainloop(o, dft, tag, opt):
    o(f".p2align 6\nL_loop_{tag}:")
    for ks in range(4):
        cur = ks & 1; nxt = cur ^ 1
        M = mfmas(cur, dft)
        R = reads(None, nxt, (ks + 1) & 3)
        gaps = [[] for _ in range(8)]
        for i in range(4): gaps[i] += R[2*i:2*i+2]
        if ks == 0:
            gaps[4].append(dmaA(2)); gaps[6].append(dmaA(3))
            pre = "s_waitcnt lgkmcnt(0)"
        elif ks == 1:
            gaps[3].append(f"s_add_u32 m0, s{sC}, s{sWB}")
            gaps[4].append(dmaB(0)); gaps[6].append(dmaB(1))
            pre = "s_waitcnt lgkmcnt(0)"
        elif ks == 2:
            gaps[4].append(dmaB(2)); gaps[6].append(dmaB(3))
            gaps[4].append(f"s_add_u32 s60, s{sC}, 32768\ns_cmp_ge_u32 s60, 98304\ns_cselect_b32 s{sC}, 0, s60")
            gaps[5].append(f"s_add_u32 s60, s{sC}, 32768\ns_cmp_ge_u32 s60, 98304\ns_cselect_b32 s61, 0, s60")
            gaps[5].append(f"v_xor_b32 v{VAR}, 0x8000, v{VAR}\nv_xor_b32 v{VAR+1}, 0x8000, v{VAR+1}")
            gaps[6].append(f"v_xor_b32 v{VAR+2}, 0x8000, v{VAR+2}\nv_xor_b32 v{VAR+3}, 0x8000, v{VAR+3}")
            gaps[7].append(f"v_add_u32 v{VBR}, s61, v{VBR0}\ns_add_u32 s{sKB}, s{sKB}, s{sSTEP}\ns_add_u32 s{sKA}, s{sKA}, 128")
            pre = "s_waitcnt lgkmcnt(0)"
        else:
            pre = "s_waitcnt vmcnt(4) lgkmcnt(0)\ns_barrier"
            gaps[3].append(f"s_mov_b32 m0, s{sMA}\ns_cmp_ge_u32 s{sN}, 14\ns_cselect_b32 s{SA+2}, 0, s{SA+2}")
            gaps[4].append(dmaA(0)); gaps[6].append(dmaA(1))
            gaps[5].append(f"s_cmp_ge_u32 s{sN}, 13\ns_cselect_b32 s{SB0+2}, 0, s{SB0+2}\ns_cselect_b32 s{SB1+2}, 0, s{SB1+2}")
            gaps[7].append(f"s_xor_b32 s{sMA}, s{sMA}, 0x8000\ns_add_u32 s{sN}, s{sN}, 1\ns_cmp_lt_u32 s{sN}, 16")
        o(pre)
        for i in range(8):
            o(M[i])
            for g in gaps[i]: o(g)
    o(f"s_cbranch_scc1 L_loop_{tag}")

def gen_p1(opt):
    o = Asm()
    name = "p1_kernel"
    o(f".globl {name}\n.p2align 8\n.type {name},@function\n{name}:")
    o("s_cmp_ge_u32 s2, 256\ns_cbranch_scc1 L_p1_end")
    o("s_load_dwordx2 s[4:5], s[0:1], 0\ns_load_dwordx2 s[8:9], s[0:1], 24\ns_load_dwordx2 s[10:11], s[0:1], 32")
    o("s_load_dwordx2 s[12:13], s[0:1], 48\ns_load_dwordx2 s[14:15], s[0:1], 56\ns_load_dwordx2 s[16:17], s[0:1], 72")
    o("s_load_dwordx2 s[18:19], s[0:1], 96\ns_load_dwordx2 s[20:21], s[0:1], 64")
    o(f"v_lshrrev_b32 v1, 6, v0\nv_and_b32 v2, 63, v0\ns_nop 0\nv_readfirstlane_b32 s{sW}, v1")
    o("s_and_b32 s60, s2, 7\ns_lshr_b32 s61, s2, 3")
    if opt.get("map1", "m8") == "m8":
        o(f"s_and_b32 s{sMB_}, s61, 7\ns_lshr_b32 s62, s61, 3\ns_lshl_b32 s{sNB}, s60, 2\ns_add_u32 s{sNB}, s{sNB}, s62")
    elif opt["map1"] == "m4":
        o(f"s_and_b32 s62, s60, 1\ns_lshl_b32 s62, s62, 2\ns_and_b32 s63, s61, 3\ns_add_u32 s{sMB_}, s62, s63")
        o(f"s_lshr_b32 s62, s60, 1\ns_lshr_b32 s63, s61, 2\ns_mul_i32 s{sNB}, s62, 7\ns_add_u32 s{sNB}, s{sNB}, s63\ns_add_u32 s64, s62, 28\ns_cmp_eq_u32 s63, 7\ns_cselect_b32 s{sNB}, s64, s{sNB}")
    elif opt["map1"] == "m2":
        o(f"s_lshr_b32 s62, s60, 1\ns_lshl_b32 s62, s62, 1\ns_and_b32 s63, s61, 1\ns_add_u32 s{sMB_}, s62, s63")
        o(f"s_and_b32 s62, s60, 1\ns_lshr_b32 s63, s61, 1\ns_mul_i32 s{sNB}, s62, 14\ns_add_u32 s{sNB}, s{sNB}, s63\ns_lshl_b32 s64, s62, 1\ns_add_u32 s64, s64, s63\ns_add_u32 s64, s64, 14\ns_cmp_ge_u32 s63, 14\ns_cselect_b32 s{sNB}, s64, s{sNB}")
    o("s_waitcnt lgkmcnt(0)")
    srd(o, SA, 4, 5, S*D*2)
    srd(o, SWS, 18, 19, WS_SIZE)
    srd(o, SM1, 16, 17, D*2)
    srd(o, SM2, 8, 9, D*D*2)
    o(f"s_lshl_b32 s62, s2, 3\ns_add_u32 s62, s62, s{sW}\ns_lshl_b32 s63, s62, 11\nv_lshlrev_b32 v3, 4, v2\ns_mov_b32 s64, {512*2048}")
    o(f"buffer_load_dwordx4 v[8:11], v3, s[{SA}:{SA+3}], s63 offen\nbuffer_load_dwordx4 v[12:15], v3, s[{SA}:{SA+3}], s63 offen offset:1024")
    o(f"buffer_load_dwordx4 v[16:19], v3, s[{SM1}:{SM1+3}], 0 offen\nbuffer_load_dwordx4 v[20:23], v3, s[{SM1}:{SM1+3}], 0 offen offset:1024")
    o(f"buffer_load_dwordx4 v[24:27], v3, s[{SM2}:{SM2+3}], s64 offen\nbuffer_load_dwordx4 v[28:31], v3, s[{SM2}:{SM2+3}], s64 offen offset:1024")
    o("s_mov_b32 s70, s62")
    o(f"s_cmp_ge_u32 s{sNB}, 28\ns_cselect_b32 s{sDFT}, 1, 0\ns_cbranch_scc1 L_p1_dftsetup")
    srd(o, SB0, 12, 13, D*F*2)
    o("s_sub_u32 s14, s14, 2048\ns_subb_u32 s15, s15, 0")
    srd(o, SB1, 14, 15, D*F*2 + 2048)
    o(f"s_mov_b32 s{sSTR}, 7168\ns_lshl_b32 s65, s{sNB}, 8")
    o(f"s_lshl_b32 s66, s{sMB_}, 8\ns_lshl_b32 s67, s{sW}, 5\ns_add_u32 s66, s66, s67\ns_lshl_b32 s66, s66, 11")
    o("s_mov_b32 s67, 11\ns_mov_b32 s68, %d" % (16384 - 1024))
    o("s_branch L_p1_setup2\nL_p1_dftsetup:")
    srd(o, SB0, 8, 9, D*D*2)
    o("s_sub_u32 s10, s10, 2048\ns_subb_u32 s11, s11, 0")
    srd(o, SB1, 10, 11, D*D*2 + 2048)
    o(f"s_mov_b32 s{sSTR}, 2048\ns_sub_u32 s{sNB}, s{sNB}, 28\ns_lshl_b32 s65, s{sNB}, 8")
    o(f"s_lshl_b32 s66, s{sMB_}, 3\ns_add_u32 s66, s66, s{sW}\ns_lshl_b32 s66, s66, 11")
    o("s_mov_b32 s67, 17\ns_mov_b32 s68, %d" % (1048576 - 1024))
    o("L_p1_setup2:")
    o("v_lshrrev_b32 v4, 3, v2\nv_lshlrev_b32 v4, s67, v4\nv_add_u32 v4, s66, v4")
    o("v_and_b32 v5, 7, v2\nv_lshrrev_b32 v6, 4, v2\nv_xor_b32 v5, v5, v6")
    o("v_xor_b32 v6, 4, v5\nv_lshlrev_b32 v5, 4, v5\nv_lshlrev_b32 v6, 4, v6")
    o(f"v_add_u32 v{VAD}, v4, v5\nv_add_u32 v4, s68, v4\nv_add_u32 v{VAD+1}, v4, v6\nv_add_u32 v4, s68, v4\nv_add_u32 v{VAD+2}, v4, v5\nv_add_u32 v4, s68, v4\nv_add_u32 v{VAD+3}, v4, v6")
    o(f"v_lshrrev_b32 v4, 4, v2\ns_lshl_b32 s66, s{sW}, 3\nv_add_u32 v5, s66, v4\nv_mul_lo_u32 v5, v5, s{sSTR}")
    o("v_lshlrev_b32 v4, 2, v4\nv_and_b32 v6, 15, v2\nv_xor_b32 v4, v4, v6\nv_lshlrev_b32 v4, 4, v4\nv_add_u32 v5, v5, v4")
    o(f"v_add_u32 v{VBD}, s65, v5\ns_lshl_b32 s66, s{sSTR}, 2\ns_sub_u32 s66, s66, 1024\nv_add_u32 v{VBD+1}, s66, v{VBD}")
    o(f"s_lshl_b32 s{sSTEP}, s{sSTR}, 6\ns_lshl_b32 s66, s{sW}, 12\ns_add_u32 s{sWB}, s66, 65536")
    o(f"s_mov_b32 s{sKA}, 0\ns_mov_b32 s{sKB}, 0\ns_mov_b32 m0, s66\ns_nop 0")
    for j in range(4): o(dmaA(j))
    o(f"s_mov_b32 m0, s{sWB}\ns_nop 0")
    for j in range(4): o(dmaB(j))
    o(f"s_add_u32 m0, s{sWB}, 32768\ns_mov_b32 s{sKB}, s{sSTEP}")
    for j in range(4): o(dmaB(j))
    o(f"s_add_u32 m0, s66, 32768\ns_mov_b32 s{sKA}, 128\ns_add_u32 s{sKB}, s{sKB}, s{sSTEP}")
    for j in range(2): o(dmaA(j))
    o(f"s_mov_b32 s{sMA}, s66\ns_mov_b32 s{sC}, 65536\ns_mov_b32 s{sN}, 0")
    o(f"s_lshr_b32 s66, s{sW}, 2\ns_lshl_b32 s66, s66, 14\nv_and_b32 v4, 31, v2\nv_lshlrev_b32 v5, 7, v4\nv_add_u32 v5, s66, v5")
    o("v_lshrrev_b32 v6, 1, v4\nv_and_b32 v6, 7, v6\nv_lshrrev_b32 v7, 5, v2\nv_xor_b32 v6, v6, v7")
    for ks in range(4):
        o(f"v_xor_b32 v7, {2*ks}, v6\nv_lshlrev_b32 v7, 4, v7\nv_add_u32 v{VAR+ks}, v5, v7")
    o(f"s_and_b32 s66, s{sW}, 3\nv_lshrrev_b32 v4, 2, v2\nv_and_b32 v4, 3, v4\nv_xor_b32 v5, s66, v4\nv_lshlrev_b32 v5, 6, v5\nv_lshlrev_b32 v4, 8, v4\nv_add_u32 v4, v4, v5")
    o("v_lshrrev_b32 v5, 5, v2\nv_lshlrev_b32 v5, 12, v5\nv_add_u32 v4, v4, v5\nv_and_b32 v5, 16, v2\nv_lshlrev_b32 v5, 1, v5\nv_add_u32 v4, v4, v5")
    o(f"v_and_b32 v5, 3, v2\nv_lshlrev_b32 v5, 3, v5\nv_add_u32 v4, v4, v5\nv_add_u32 v{VBR0}, 0x10000, v4\nv_mov_b32 v{VBR}, v{VBR0}")
    for i in range(128): o(f"v_mov_b32 v{ACC+i}, 0")
    o("s_waitcnt vmcnt(14)\nv_mov_b32 v40, 0\nv_mov_b32 v41, 0")
    for i in range(8):
        x, g, d = 8+i, 16+i, 24+i
        o(f"v_lshlrev_b32 v32, 16, v{x}\nv_and_b32 v33, 0xffff0000, v{x}\nv_lshlrev_b32 v34, 16, v{g}\nv_and_b32 v35, 0xffff0000, v{g}")
        o(f"v_lshlrev_b32 v36, 16, v{d}\nv_and_b32 v37, 0xffff0000, v{d}\nv_mul_f32 v34, v32, v34\nv_mul_f32 v35, v33, v35")
        o(f"v_fmac_f32 v41, v32, v36\nv_cvt_pk_bf16_f32 v34, v34, v35\nv_fmac_f32 v41, v33, v37")
        o(f"v_lshlrev_b32 v35, 16, v34\nv_and_b32 v34, 0xffff0000, v34\nv_add_f32 v40, v40, v35\nv_add_f32 v40, v40, v34")
    for dpp in ["quad_perm:[1,0,3,2]", "quad_perm:[2,3,0,1]", "row_half_mirror", "row_mirror"]:
        o(f"s_nop 1\nv_add_f32_dpp v40, v40, v40 {dpp} row_mask:0xf bank_mask:0xf\nv_add_f32_dpp v41, v41, v41 {dpp} row_mask:0xf bank_mask:0xf")
    o("s_nop 1")
    for i in range(4): o(f"v_readlane_b32 s{72+i}, v40, {16*i}\nv_readlane_b32 s{76+i}, v41, {16*i}")
    o("s_nop 1\nv_mov_b32 v40, s72\nv_mov_b32 v41, s76")
    for i in range(1, 4): o(f"v_add_f32 v40, s{72+i}, v40\nv_add_f32 v41, s{76+i}, v41")
    o("v_cvt_pk_bf16_f32 v40, v40, v40\nv_cvt_pk_bf16_f32 v41, v41, v41\nv_lshlrev_b32 v40, 16, v40")
    o(f"v_mul_f32 v40, {hx(f2u(-math.log2(math.e)))}, v40\nv_exp_f32 v40, v40\ns_nop 0\nv_add_f32 v40, 1.0, v40\nv_rcp_f32 v40, v40\ns_nop 0")
    o("v_cvt_pk_bf16_f32 v40, v40, v40\nv_lshlrev_b32 v40, 16, v40")
    o(f"s_lshl_b32 s72, s70, 2\ns_add_u32 s72, s72, {hx(WS_G)}")
    o("s_and_b32 s73, s70, 63\ns_lshl_b32 s73, s73, 6\ns_lshr_b32 s74, s70, 6")
    o("s_and_b32 s75, s74, 0x13\ns_and_b32 s76, s74, 4\ns_lshl_b32 s76, s76, 1\ns_or_b32 s75, s75, s76\ns_and_b32 s76, s74, 8\ns_lshr_b32 s76, s76, 1\ns_or_b32 s75, s75, s76")
    o(f"s_lshl_b32 s75, s75, 1\ns_add_u32 s73, s73, s75\ns_add_u32 s73, s73, {hx(WS_Z + 512*8192)}")
    o(f"s_lshl_b32 s74, s2, 7\ns_add_u32 s74, s74, {hx(WS_FL)}\nv_mov_b32 v42, 0")
    o("s_mov_b64 exec, 1")
    o(f"buffer_store_dword v40, v42, s[{SWS}:{SWS+3}], s72 offen\nbuffer_store_short v41, v42, s[{SWS}:{SWS+3}], s73 offen\nbuffer_store_dword v42, v42, s[{SWS}:{SWS+3}], s74 offen")
    o("s_mov_b64 exec, -1")
    o("s_waitcnt vmcnt(9)\ns_barrier")
    for r in reads(None, 0, 0): o(r)
    o(f"s_cmp_eq_u32 s{sDFT}, 1\ns_cbranch_scc1 L_loop_dft")
    mainloop(o, False, "ffn", opt)
    o("s_nop 15")
    c0 = -2.0 * math.sqrt(2.0/math.pi) * math.log2(math.e); c1 = c0 * 0.044715
    o(f"v_mov_b32 v62, {hx(f2u(c0))}\ns_mov_b32 s60, {hx(f2u(c1))}")
    o(f"s_and_b32 s61, s{sW}, 3\ns_lshr_b32 s62, s61, 1\ns_lshl_b32 s63, s{sNB}, 1\ns_add_u32 s62, s62, s63\ns_lshl_b32 s62, s62, 18")
    o(f"s_and_b32 s61, s61, 1\ns_lshl_b32 s61, s61, 11\ns_add_u32 s62, s62, s61\ns_lshl_b32 s63, s{sMB_}, 15\ns_add_u32 s62, s62, s63\ns_lshr_b32 s63, s{sW}, 2\ns_lshl_b32 s63, s63, 14\ns_add_u32 s62, s62, s63")
    o(f"s_add_u32 s62, s62, {hx(WS_H)}\nv_lshlrev_b32 v63, 4, v2")
    for mt in range(4):
        for half in range(2):
            G = acc(mt, 0) + 8*half; U = acc(mt, 1) + 8*half
            T = 8 + 8 * ((mt*2+half) & 1) * 2
            P = 40 + 4 * ((mt*2+half) & 3)
            for i in range(8): o(f"v_mul_f32 v{T+i}, v{G+i}, v{G+i}")
            for i in range(8): o(f"v_fma_f32 v{T+i}, v{T+i}, s60, v62")
            for i in range(8): o(f"v_mul_f32 v{T+i}, v{T+i}, v{G+i}")
            for i in range(8): o(f"v_exp_f32 v{T+i}, v{T+i}")
            for i in range(8): o(f"v_mul_f32 v{T+8+i}, v{G+i}, v{U+i}")
            for i in range(8): o(f"v_add_f32 v{T+i}, 1.0, v{T+i}")
            for i in range(8): o(f"v_rcp_f32 v{T+i}, v{T+i}")
            o("s_nop 0")
            for i in range(8): o(f"v_mul_f32 v{T+i}, v{T+i}, v{T+8+i}")
            for i in range(4): o(f"v_cvt_pk_bf16_f32 v{P+i}, v{T+2*i}, v{T+2*i+1}")
            o(f"buffer_store_dwordx4 {vr(P,4)}, v63, s[{SWS}:{SWS+3}], s62 offen offset:{half*1024} {opt.get('hst','')}")
        o("s_add_u32 s62, s62, 4096")
    o("s_endpgm")
    mainloop(o, True, "dft", opt)
    o("s_nop 15")
    o(f"s_and_b32 s61, s{sW}, 3\ns_lshl_b32 s61, s61, 5\ns_lshl_b32 s62, s{sNB}, 7\ns_add_u32 s61, s61, s62\nv_and_b32 v4, 31, v2\nv_add_u32 v4, s61, v4\nv_lshlrev_b32 v4, 13, v4")
    o(f"v_lshrrev_b32 v5, 5, v2\nv_lshlrev_b32 v5, 4, v5\nv_add_u32 v63, v4, v5")
    o(f"s_lshl_b32 s62, s{sMB_}, 9\ns_lshr_b32 s63, s{sW}, 2\ns_lshl_b32 s63, s63, 8\ns_add_u32 s62, s62, s63\ns_add_u32 s62, s62, {hx(WS_Z)}\ns_add_u32 s63, s62, 4096")
    n = 0
    for mat in range(2):
        for mt in range(4):
            for kap in range(2):
                A = acc(mt, mat) + 8*kap; P = 8 + 4*(n & 7); n += 1
                for i in range(4): o(f"v_cvt_pk_bf16_f32 v{P+i}, v{A+2*i}, v{A+2*i+1}")
                o(f"buffer_store_dwordx4 {vr(P,4)}, v63, s[{SWS}:{SWS+3}], s{62+mat} offen offset:{mt*64+kap*32} {opt.get('hst','')}")
    o("L_p1_end:\ns_endpgm")
    return o.text(), kd(name, 256)
```

```python
from common import *
import math
NST = 5
NK = 28
SH, SWD, SWS, SOUT, SDBG = 24, 28, 32, 36, 40
sW, sPB, sET, sKH_, sN, sST, sK1, sK2, sLB = 48, 49, 50, 51, 52, 53, 54, 55, 56
ACC = 192
SETS = [128, 160]
VHR, VW0, VW1, VHB, VWB0, VWB1 = 120, 121, 122, 123, 124, 125

def c_reads(st, half):
    b = SETS[st]; r = []
    for kk in range(2):
        kap = 2*half + kk; s = b + 16*kk
        r.append(f"ds_read_b64_tr_b16 {vr(s+8,2)}, v{VW0} offset:{kap*4096}")
        r.append(f"ds_read_b64_tr_b16 {vr(s+10,2)}, v{VW0} offset:{kap*4096+2048}")
        r.append(f"ds_read_b128 {vr(s,4)}, v{VHR} offset:{kap*1024}")
        r.append(f"ds_read_b128 {vr(s+4,4)}, v{VHR} offset:{4096+kap*1024}")
        r.append(f"ds_read_b64_tr_b16 {vr(s+12,2)}, v{VW1} offset:{kap*4096}")
        r.append(f"ds_read_b64_tr_b16 {vr(s+14,2)}, v{VW1} offset:{kap*4096+2048}")
    return r
def c_mfmas(st):
    b = SETS[st]; r = []
    for kk in range(2):
        s = b + 16*kk
        for (u, p) in [(0,0),(0,1),(1,0),(1,1)]:
            A = vr(ACC + (p*2+u)*16, 16)
            r.append(f"v_mfma_f32_32x32x16_bf16 {A}, {vr(s+8+4*u,4)}, {vr(s+4*p,4)}, {A}")
    return r

def fft(o):
    ZA, ZB, C1, S1, N1 = 8, 24, 40, 48, 56
    U, TW, C3 = 64, 128, 192
    o(f"v_and_b32 v3, 31, v2\nv_lshrrev_b32 v4, 5, v2\nv_lshlrev_b32 v5, 6, v3\nv_lshlrev_b32 v6, 4, v4\nv_add_u32 v5, v5, v6")
    o(f"s_lshl_b32 s61, s60, 13\ns_add_u32 s61, s61, {hx(WS_Z)}\ns_add_u32 s62, s61, 4096")
    for part in range(2):
        for tile in range(2):
            for kap in range(2):
                o(f"buffer_load_dwordx4 {vr((ZA,ZB)[part]+(tile*2+kap)*4,4)}, v5, s[{SWS}:{SWS+3}], s{61+part} offen offset:{tile*2048+kap*32}")
    o("v_cvt_f32_u32 v210, v3\nv_cvt_f32_u32 v211, v4\nv_and_b32 v212, 1, v2\nv_mul_u32_u24 v212, 0x8000, v212\nv_mul_u32_u24 v212, 0x10001, v212")
    o("v_mul_f32 v211, v210, v211")
    def cs(dc, ds, cst, scale, tmp):
        o(f"v_mul_f32 v{tmp}, {hx(f2u(4.0*scale))}, v211\nv_fmamk_f32 v{tmp}, v210, {hx(f2u(cst*scale))}, v{tmp}\nv_fract_f32 v{tmp}, v{tmp}")
        o(f"v_cos_f32 v{dc}, v{tmp}\nv_sin_f32 v{ds}, v{tmp}")
    def slot(j): return 8*(j >> 2) + (j & 3)
    for j in range(8): cs(U+j, U+8+j, slot(j), 1/32., 214 + (j & 3))
    o("s_nop 0")
    for i in range(4):
        o(f"v_cvt_pk_bf16_f32 v{C1+i}, v{U+2*i}, v{U+2*i+1}\nv_cvt_pk_bf16_f32 v{S1+i}, v{U+8+2*i}, v{U+8+2*i+1}")
    for i in range(4):
        o(f"v_xor_b32 v{C1+4+i}, v{C1+i}, v212\nv_xor_b32 v{S1+4+i}, v{S1+i}, v212")
    for i in range(8): o(f"v_xor_b32 v{N1+i}, 0x80008000, v{S1+i}")
    for kp in range(2):
        for j in range(8): cs(U+j, U+8+j, 16*kp + slot(j), 1/64., 214 + (j & 3))
        o("s_nop 0")
        for i in range(4):
            o(f"v_cvt_pk_bf16_f32 v{C3+4*kp+i}, v{U+2*i}, v{U+2*i+1}\nv_cvt_pk_bf16_f32 v{C3+8+4*kp+i}, v{U+8+2*i}, v{U+8+2*i+1}")
    for tile in range(2):
        for r in range(16): cs(TW+tile*16+r, TW+32+tile*16+r, 32*tile + 8*(r >> 2) + (r & 3), 1/2048., 214 + (r & 3))
    for i in range(64): o(f"v_mov_b32 v{U+i}, 0")
    o("s_waitcnt vmcnt(0)")
    o("s_cmp_lg_u32 s60, 512\ns_cbranch_scc1 L_fft_nz")
    for i in range(16): o(f"v_mov_b32 v{ZB+i}, 0")
    o("L_fft_nz:\ns_nop 1")
    mf = "v_mfma_f32_32x32x16_bf16"
    for kap in range(2):
        for tile in range(2):
            za = vr(ZA+(tile*2+kap)*4, 4); zb = vr(ZB+(tile*2+kap)*4, 4)
            re = vr(U+tile*16, 16); im = vr(U+32+tile*16, 16)
            o(f"{mf} {re}, {za}, {vr(C1+4*kap,4)}, {re}\n{mf} {im}, {zb}, {vr(C1+4*kap,4)}, {im}")
            o(f"{mf} {re}, {zb}, {vr(S1+4*kap,4)}, {re}\n{mf} {im}, {za}, {vr(N1+4*kap,4)}, {im}")
    o("s_nop 15")
    for i in range(0, 32, 2):
        for d in range(2):
            k = i + d
            o(f"v_mul_f32 v{214+d}, v{U+k}, v{TW+k}\nv_mul_f32 v{216+d}, v{U+32+k}, v{TW+k}")
        for d in range(2):
            k = i + d
            o(f"v_fmac_f32 v{214+d}, v{U+32+k}, v{TW+32+k}\nv_fma_f32 v{216+d}, -v{U+k}, v{TW+32+k}, v{216+d}")
        o(f"v_cvt_pk_bf16_f32 v{8+i//2}, v214, v215\nv_cvt_pk_bf16_f32 v{24+i//2}, v216, v217")
    for T in range(2):
        for part in range(2):
            for kp in range(4):
                d = TW + ((T*2+part)*4 + kp)*4; s = C3 + 8*part + 4*(kp & 1)
                for i in range(4):
                    if T == 0 and kp < 2: o(f"v_mov_b32 v{d+i}, v{s+i}")
                    elif T == 0: o(f"v_xor_b32 v{d+i}, v{s+i}, v212")
                    else: o(f"v_xor_b32 v{d+i}, 0x80000000, v{d+i-32}")
    for i in range(32): o(f"v_mov_b32 v{U+i}, 0")
    o("s_nop 1")
    for kp in range(4):
        for part in range(2):
            for T in range(2):
                Y = vr(U+16*T, 16)
                o(f"{mf} {Y}, {vr(TW+((T*2+part)*4+kp)*4,4)}, {vr(8+16*part+4*kp,4)}, {Y}")
    o("v_lshlrev_b32 v5, 2, v3\nv_lshlrev_b32 v6, 9, v4\nv_add_u32 v5, v5, v6")
    o(f"s_lshl_b32 s61, s60, 13\ns_add_u32 s61, s61, {hx(WS_YT)}\ns_add_u32 s62, s61, 4096\ns_nop 15")
    for T in range(2):
        for r in range(16):
            o(f"buffer_store_dword v{U+16*T+r}, v5, s[{SWS}:{SWS+3}], s{61+T} offen offset:{(8*(r>>2)+(r&3))*128} sc1")

def gen_p2(opt):
    o = Asm()
    name = "p2_kernel"
    o(f".globl {name}\n.p2align 8\n.type {name},@function\n{name}:")
    o("s_cmp_ge_u32 s2, 256\ns_cbranch_scc1 L_p2_end")
    o("s_load_dwordx2 s[4:5], s[0:1], 64\ns_load_dwordx2 s[6:7], s[0:1], 80\ns_load_dwordx2 s[8:9], s[0:1], 88\ns_load_dwordx2 s[10:11], s[0:1], 96")
    o(f"v_lshrrev_b32 v1, 6, v0\nv_and_b32 v2, 63, v0\ns_nop 0\nv_readfirstlane_b32 s{sW}, v1")
    o(f"s_and_b32 s60, s2, 7\ns_lshr_b32 s61, s2, 3\ns_lshr_b32 s62, s60, 1\ns_lshl_b32 s62, s62, 2\ns_lshr_b32 s63, s61, 3\ns_add_u32 s{sPB}, s62, s63")
    o(f"s_and_b32 s{sET}, s61, 7\ns_and_b32 s{sKH_}, s60, 1")
    o("s_waitcnt lgkmcnt(0)")
    srd(o, SH, 10, 11, WS_Z)
    srd(o, SWD, 4, 5, F*D*2)
    srd(o, SWS, 10, 11, WS_SIZE)
    srd(o, SOUT, 6, 7, S*D*2)
    srd(o, SDBG, 8, 9, 256)
    o(f"s_cmp_lt_u32 s{sW}, 4\ns_cbranch_scc1 L_p2_cons")
    VH, VWD = 10, 12
    o(f"s_sub_u32 s60, s{sW}, 4\ns_mul_i32 s61, s{sKH_}, {NK*262144}\ns_lshl_b32 s62, s{sPB}, 14\ns_add_u32 s61, s61, s62\ns_lshl_b32 s{sLB}, s60, 12\ns_add_u32 s61, s61, s{sLB}")
    o(f"v_lshlrev_b32 v3, 4, v2\nv_add_u32 v{VH}, s61, v3")
    o(f"v_lshrrev_b32 v4, 4, v2\nv_lshlrev_b32 v5, 11, v4\nv_lshlrev_b32 v4, 2, v4\nv_and_b32 v6, 15, v2\nv_xor_b32 v4, v4, v6\nv_lshlrev_b32 v4, 4, v4\nv_add_u32 v5, v5, v4")
    o(f"s_mul_i32 s61, s{sKH_}, {1792*2048}\ns_lshl_b32 s62, s{sET}, 8\ns_add_u32 s61, s61, s62\ns_lshl_b32 s62, s60, 15\ns_add_u32 s61, s61, s62\nv_add_u32 v{VWD}, s61, v5")
    for j in range(1, 4): o(f"v_add_u32 v{VWD+j}, {8192-1024}, v{VWD+j-1}")
    def issue():
        o(f"s_add_u32 m0, s{sST}, s{sLB}\ns_nop 0")
        for j in range(4): o(f"buffer_load_dwordx4 v{VH}, s[{SH}:{SH+3}], s{sK1} offen offset:{j*1024} lds")
        o(f"s_add_u32 m0, m0, 16384\ns_nop 0")
        for j in range(4): o(f"buffer_load_dwordx4 v{VWD+j}, s[{SWD}:{SWD+3}], s{sK2} offen offset:{j*1024} lds")
        o(f"s_add_u32 s{sK1}, s{sK1}, 262144\ns_add_u32 s{sK2}, s{sK2}, 131072")
        o(f"s_add_u32 s{sST}, s{sST}, 32768\ns_cmp_ge_u32 s{sST}, {NST*32768}\ns_cselect_b32 s{sST}, 0, s{sST}")
    o(f"s_mov_b32 s{sK1}, 0\ns_mov_b32 s{sK2}, 0\ns_mov_b32 s{sST}, 0\ns_mov_b32 s{sN}, 0")
    o("L_p2_lpro:"); issue()
    o(f"s_add_u32 s{sN}, s{sN}, 1\ns_cmp_lt_u32 s{sN}, {NST-1}\ns_cbranch_scc1 L_p2_lpro")
    o(f"s_mov_b32 s{sN}, 0\nL_p2_lloop:\ns_waitcnt vmcnt({8*(NST-2)})\ns_barrier")
    o(f"s_cmp_ge_u32 s{sN}, {NK-(NST-1)}\ns_cselect_b32 s{SH+2}, 0, s{SH+2}\ns_cselect_b32 s{SWD+2}, 0, s{SWD+2}")
    issue()
    o(f"s_add_u32 s{sN}, s{sN}, 1\ns_cmp_lt_u32 s{sN}, {NK}\ns_cbranch_scc1 L_p2_lloop")
    o("s_waitcnt vmcnt(0)\ns_barrier\ns_barrier\ns_branch L_p2_epi")
    o("L_p2_cons:")
    o(f"s_lshl_b32 s60, s2, 1\ns_add_u32 s60, s60, s{sW}\ns_cmp_lt_u32 s{sW}, 2\ns_cbranch_scc1 L_p2_fft")
    o(f"s_mov_b32 s60, 512\ns_lshl_b32 s61, s2, 2\ns_add_u32 s61, s61, s{sW}\ns_cmp_lg_u32 s61, 2\ns_cbranch_scc1 L_p2_nofft")
    o("L_p2_fft:")
    fft(o)
    o("L_p2_nofft:")
    o(f"s_and_b32 s60, s{sW}, 1\ns_lshl_b32 s60, s60, 13\nv_lshlrev_b32 v3, 4, v2\nv_add_u32 v{VHB}, s60, v3")
    o(f"s_lshr_b32 s61, s{sW}, 1\ns_lshl_b32 s61, s61, 1\nv_lshrrev_b32 v4, 2, v2\nv_and_b32 v4, 3, v4\nv_xor_b32 v5, s61, v4\nv_lshlrev_b32 v4, 8, v4")
    o("v_lshrrev_b32 v6, 5, v2\nv_lshlrev_b32 v6, 10, v6\nv_add_u32 v4, v4, v6\nv_and_b32 v6, 16, v2\nv_lshlrev_b32 v6, 1, v6\nv_add_u32 v4, v4, v6")
    o("v_and_b32 v6, 3, v2\nv_lshlrev_b32 v6, 3, v6\nv_add_u32 v4, v4, v6\nv_add_u32 v4, 0x4000, v4")
    o(f"v_lshlrev_b32 v6, 6, v5\nv_add_u32 v{VWB0}, v4, v6\nv_xor_b32 v5, 1, v5\nv_lshlrev_b32 v6, 6, v5\nv_add_u32 v{VWB1}, v4, v6")
    o(f"v_mov_b32 v{VHR}, v{VHB}\nv_mov_b32 v{VW0}, v{VWB0}\nv_mov_b32 v{VW1}, v{VWB1}")
    for i in range(64): o(f"v_mov_b32 v{ACC+i}, 0")
    o(f"s_mov_b32 s{sN}, 0\ns_mov_b32 s{sST}, 0")
    o("s_waitcnt vmcnt(0)\ns_barrier")
    o(f"s_cmp_lg_u32 s{sW}, 0\ns_cbranch_scc1 L_p2_nocnt\nv_mov_b32 v3, 0\nv_mov_b32 v4, 1\ns_mov_b64 exec, 1")
    o(f"buffer_atomic_add v4, v3, s[{SDBG}:{SDBG+3}], 0 offen sc1\ns_mov_b64 exec, -1\nL_p2_nocnt:")
    for r in c_reads(0, 0): o(r)
    o(".p2align 6\nL_p2_cloop:")
    for half in range(2):
        M = c_mfmas(half); R = c_reads(half ^ 1, half ^ 1)
        gaps = [[] for _ in range(8)]
        for i in range(6): gaps[i] += R[2*i:2*i+2]
        if half == 0:
            o("s_waitcnt lgkmcnt(6)")
            gaps[6].append(f"s_add_u32 s{sST}, s{sST}, 32768\ns_cmp_ge_u32 s{sST}, {NST*32768}\ns_cselect_b32 s{sST}, 0, s{sST}")
            gaps[7].append(f"v_add_u32 v{VHR}, s{sST}, v{VHB}\nv_add_u32 v{VW0}, s{sST}, v{VWB0}\nv_add_u32 v{VW1}, s{sST}, v{VWB1}")
            gaps[3].append("s_waitcnt lgkmcnt(8)")
        else:
            o("s_waitcnt lgkmcnt(0)\ns_barrier")
            gaps[7].append(f"s_add_u32 s{sN}, s{sN}, 1\ns_cmp_lt_u32 s{sN}, {NK}")
        for i in range(8):
            o(M[i])
            for g in gaps[i]: o(g)
    o("s_cbranch_scc1 L_p2_cloop")
    o(f"s_waitcnt lgkmcnt(0)\ns_nop 15\ns_lshr_b32 s60, s{sW}, 1\ns_and_b32 s61, s{sW}, 1\ns_lshl_b32 s61, s61, 14\nv_lshlrev_b32 v3, 4, v2")
    o(f"s_cmp_eq_u32 s60, s{sKH_}\ns_cbranch_scc1 L_p2_own")
    o(f"s_xor_b32 s62, s2, 1\ns_lshl_b32 s62, s62, 15\ns_add_u32 s62, s62, s61\ns_add_u32 s62, s62, {hx(WS_XB)}")
    for i in range(16):
        o(f"buffer_store_dwordx4 {vr(ACC+4*i,4)}, v3, s[{SWS}:{SWS+3}], s62 offen offset:{(i&3)*1024} sc1")
        if (i & 3) == 3: o("s_add_u32 s62, s62, 4096")
    o("s_waitcnt vmcnt(0)\ns_barrier\ns_branch L_p2_epi")
    o("L_p2_own:\nv_add_u32 v3, s61, v3")
    for i in range(16): o(f"ds_write_b128 v3, {vr(ACC+4*i,4)} offset:{i*1024}")
    o("s_waitcnt lgkmcnt(0)\ns_barrier")
    o("L_p2_epi:")
    o(f"s_cmp_lg_u32 s{sW}, 0\ns_cbranch_scc1 L_p2_nofl\ns_xor_b32 s62, s2, 1\ns_lshl_b32 s62, s62, 7\ns_add_u32 s62, s62, {hx(WS_FL)}\nv_mov_b32 v3, 0\nv_mov_b32 v4, 1\ns_mov_b64 exec, 1")
    o(f"buffer_store_dword v4, v3, s[{SWS}:{SWS+3}], s62 offen sc1\ns_mov_b64 exec, -1\nL_p2_nofl:")
    o(f"s_and_b32 s60, s{sW}, 3\ns_lshr_b32 s61, s{sW}, 2\ns_lshl_b32 s62, s60, 13\ns_lshl_b32 s63, s61, 12\ns_add_u32 s62, s62, s63\nv_lshlrev_b32 v3, 4, v2\nv_add_u32 v3, s62, v3")
    for q in range(4): o(f"ds_read_b128 {vr(16+4*q,4)}, v3 offset:{q*1024}")
    o(f"s_lshl_b32 s63, s{sPB}, 7\ns_lshl_b32 s64, s60, 5\ns_add_u32 s63, s63, s64\nv_and_b32 v4, 31, v2\nv_add_u32 v4, s63, v4\nv_lshrrev_b32 v5, 5, v2")
    o(f"s_lshl_b32 s64, s{sET}, 7\ns_lshl_b32 s65, s{sKH_}, 6\ns_add_u32 s64, s64, s65\ns_lshl_b32 s65, s61, 5\ns_add_u32 s64, s64, s65")
    o(f"v_lshlrev_b32 v6, 2, v4\ns_mov_b32 s66, {hx(WS_G)}\nbuffer_load_dword v8, v6, s[{SWS}:{SWS+3}], s66 offen")
    o(f"v_mov_b32 v9, 0\nL_p2_poll1:\nbuffer_load_dword v10, v9, s[{SDBG}:{SDBG+3}], 0 offen sc1\ns_waitcnt vmcnt(0)\nv_readfirstlane_b32 s66, v10\ns_nop 3\ns_cmp_ge_u32 s66, 256\ns_cbranch_scc1 L_p2_poll1d\ns_sleep 1\ns_branch L_p2_poll1\nL_p2_poll1d:")
    o("v_lshlrev_b32 v7, 15, v5\ns_cmp_ge_u32 s64, 512\ns_cbranch_scc1 L_p2_mir")
    o(f"v_add_u32 v7, v6, v7\ns_lshl_b32 s66, s64, 13\ns_mov_b32 s67, 8192\ns_branch L_p2_mird\nL_p2_mir:")
    o(f"v_sub_u32 v6, 0x800, v4\nv_and_b32 v6, 0x7ff, v6\nv_lshlrev_b32 v6, 2, v6\nv_sub_u32 v7, 0x8000, v7\nv_add_u32 v7, v6, v7\ns_sub_u32 s66, 1020, s64\ns_lshl_b32 s66, s66, 13\ns_mov_b32 s67, -8192\nL_p2_mird:")
    o(f"s_add_u32 s66, s66, {hx(WS_YT)}")
    for r in range(16):
        c = 8*(r >> 2) + (r & 3)
        o(f"s_mul_i32 s68, s67, {c}\ns_add_u32 s68, s68, s66\nbuffer_load_dword v{32+r}, v7, s[{SWS}:{SWS+3}], s68 offen sc1")
    o(f"s_lshl_b32 s66, s2, 7\ns_add_u32 s66, s66, {hx(WS_FL)}\nL_p2_poll2:\nbuffer_load_dword v10, v9, s[{SWS}:{SWS+3}], s66 offen sc1\ns_waitcnt vmcnt(0)\nv_readfirstlane_b32 s67, v10\ns_nop 3\ns_cmp_eq_u32 s67, 1\ns_cbranch_scc1 L_p2_poll2d\ns_sleep 1\ns_branch L_p2_poll2\nL_p2_poll2d:")
    o(f"s_lshl_b32 s66, s2, 15\ns_add_u32 s66, s66, {hx(WS_XB)}")
    for q in range(4): o(f"buffer_load_dwordx4 {vr(48+4*q,4)}, v3, s[{SWS}:{SWS+3}], s66 offen offset:{q*1024} sc1")
    o("v_sub_f32 v11, 1.0, v8\nv_cvt_pk_bf16_f32 v11, v11, v11\nv_lshlrev_b32 v11, 16, v11")
    for r in range(16): o(f"v_mul_f32 v{32+r}, v8, v{32+r}")
    o("v_lshlrev_b32 v6, 11, v4\nv_lshlrev_b32 v7, 4, v5\nv_add_u32 v6, v6, v7\ns_lshl_b32 s64, s64, 1")
    o("s_waitcnt vmcnt(0) lgkmcnt(0)")
    for r in range(16): o(f"v_add_f32 v{16+r}, v{16+r}, v{48+r}")
    for r in range(16): o(f"v_fmac_f32 v{32+r}, v11, v{16+r}")
    for i in range(8): o(f"v_cvt_pk_bf16_f32 v{64+i}, v{32+2*i}, v{33+2*i}")
    o("s_nop 1\nv_permlane32_swap_b32 v64, v66\nv_permlane32_swap_b32 v65, v67\nv_permlane32_swap_b32 v68, v70\nv_permlane32_swap_b32 v69, v71")
    o(f"buffer_store_dwordx4 v[64:67], v6, s[{SOUT}:{SOUT+3}], s64 offen\nbuffer_store_dwordx4 v[68:71], v6, s[{SOUT}:{SOUT+3}], s64 offen offset:32")
    o("L_p2_end:\ns_endpgm")
    return o.text(), kd(name, 256)
```

```python
import sys, json
from common import *
from p1 import gen_p1
from p2 import gen_p2, NST
HDR = open("gated_mix__spectral_fnet__geglu_ffn__prompt.s.ref").read().split("; Override launch")[0]
def build(opt):
    t1, k1 = gen_p1(opt); t2, k2 = gen_p2(opt)
    s = HDR
    s += "; @launch kernel=p1_kernel grid=(256,1,1) block=(512,1,1) lds=163840\n"
    s += f"; @launch kernel=p2_kernel grid=(256,1,1) block=(512,1,1) lds={NST*32768}\n"
    s += '.amdgcn_target "amdgcn-amd-amdhsa--gfx950"\n.text\n' + t1 + t2
    s += '.section .rodata,"a"\n' + k1 + k2
    return s
if __name__ == "__main__":
    out = sys.argv[1] if len(sys.argv) > 1 else "gated_mix__spectral_fnet__geglu_ffn__prompt.s"
    opt = json.loads(sys.argv[2]) if len(sys.argv) > 2 else {}
    open(out, "w").write(build(opt))
```

```python
import struct
S, D, F = 2048, 1024, 3584
WS_H   = 0x0000000
WS_Z   = 0x1000000
WS_G   = 0x1500000
WS_YT  = 0x1600000
WS_XB  = 0x1B00000
WS_FL  = 0x2400000
WS_ST  = 0x2480000
WS_SIZE = 0x2500000
def f2u(x): return struct.unpack("<I", struct.pack("<f", x))[0]
def hx(x): return "0x%08x" % (x & 0xffffffff)
class Asm:
    def __init__(self): self.L = []
    def __call__(self, s):
        for l in s.split("\n"):
            l = l.strip()
            if l: self.L.append(("" if l.endswith(":") else "    ") + l)
    def text(self): return "\n".join(self.L) + "\n"
def vr(a, n=1): return f"v{a}" if n == 1 else f"v[{a}:{a+n-1}]"
def sr(a, n=1): return f"s{a}" if n == 1 else f"s[{a}:{a+n-1}]"
def kd(name, vgpr, sgpr=102, accum=None):
    accum = accum or ((vgpr + 3) // 4 * 4)
    return f""".p2align 6
.amdhsa_kernel {name}
  .amdhsa_next_free_vgpr {vgpr}
  .amdhsa_next_free_sgpr {sgpr}
  .amdhsa_accum_offset {accum}
  .amdhsa_group_segment_fixed_size 0
  .amdhsa_kernarg_size 104
  .amdhsa_user_sgpr_count 2
  .amdhsa_user_sgpr_kernarg_segment_ptr 1
  .amdhsa_system_sgpr_workgroup_id_x 1
.end_amdhsa_kernel
"""
def srd(o, d, lo, hi, nbytes):
    o(f"s_mov_b32 s{d}, s{lo}\ns_and_b32 s{d+1}, s{hi}, 0xffff\ns_mov_b32 s{d+2}, {hx(nbytes)}\ns_mov_b32 s{d+3}, 0x20000")

def stamp(o, opt, i):
    if opt.get("stamp"):
        o(f"s_memrealtime s[{80+4*i}:{81+4*i}]\ns_memtime s[{82+4*i}:{83+4*i}]\ns_waitcnt lgkmcnt(0)")
def stamp_out(o, opt, kidx, sW, srdn, n):
    if opt.get("stamp"):
        o(f"s_waitcnt vmcnt(0)\ns_memrealtime s[{80+4*(n-1)}:{81+4*(n-1)}]\ns_memtime s[{82+4*(n-1)}:{83+4*(n-1)}]\ns_waitcnt lgkmcnt(0)")
        o(f"s_lshl_b32 s60, s2, 3\ns_add_u32 s60, s60, s{sW}\ns_lshl_b32 s60, s60, 6\ns_add_u32 s60, s60, {hx(WS_ST + kidx*131072)}\nv_mov_b32 v1, 0\ns_mov_b64 exec, 1")
        for i in range(n):
            o(f"v_mov_b32 v4, s{80+4*i}\nv_mov_b32 v5, s{82+4*i}\nbuffer_store_dwordx2 v[4:5], v1, s[{srdn}:{srdn+3}], s60 offen offset:{8*i}\ns_nop 1")
        o("s_mov_b64 exec, -1")
```

```python
from common import *
import math

ACC = 128
def acc(mt, nt): return ACC + (mt * 4 + nt) * 4
SETS = [dict(X=16, W=48), dict(X=64, W=96)]
VAR = 112
VBR = 114
VBR0 = 116
VAD = 118
VBD = 122
VPF = 124
SA, SB0, SB1, SWS, SM1, SM2 = 24, 28, 32, 36, 40, 44
sW, sMB_, sNB, sDFT, sSTR, sKA, sKB, sSTEP, sMA, sC, sN, sWB = 48, 49, 50, 51, 52, 53, 54, 55, 56, 57, 58, 59

def reads(st, ks):
    s = SETS[st]
    def w(nt, rd): return f"ds_read_b64_tr_b16 {vr(s['W']+nt*4+rd*2,2)}, v{VBR+(nt&1)} offset:{ks*16384+(nt>>1)*2048+rd*1024}"
    def x(mt): return f"ds_read_b128 {vr(s['X']+mt*4,4)}, v{VAR+ks} offset:{mt*2048}"
    return [w(0,0), w(0,1), x(0), w(1,0), w(1,1), x(1), w(2,0), w(2,1), x(2), w(3,0), w(3,1), x(3), x(4), x(5), x(6), x(7)]

def order(opt):
    k = opt.get("order", "msnake")
    if k == "msnake": return [(m, n if m % 2 == 0 else 3 - n) for m in range(8) for n in range(4)]
    if k == "nsnake": return [(m if n % 2 == 0 else 7 - m, n) for n in range(4) for m in range(8)]
    if k == "mfirst": return [(m, n) for m in range(8) for n in range(4)]

def mfmas(st, dft, opt):
    s = SETS[st]; r = []
    for (mt, nt) in order(opt):
        W = vr(s['W']+nt*4,4); X = vr(s['X']+mt*4,4); A = vr(acc(mt,nt),4)
        a, b = (X, W) if dft else (W, X)
        r.append(f"v_mfma_f32_16x16x32_bf16 {A}, {a}, {b}, {A}")
    return r

def dmaA(j): return f"buffer_load_dwordx4 v{VAD+j}, s[{SA}:{SA+3}], s{sKA} offen offset:{j*1024} lds"
def dmaB(j):
    srdn = SB0 if j < 2 else SB1
    return f"buffer_load_dwordx4 v{VBD+(j&1)}, s[{srdn}:{srdn+3}], s{sKB} offen offset:{j*1024} lds"

def mainloop(o, dft, tag, opt):
    o(f".p2align 6\nL_loop_{tag}:")
    for ks in range(2):
        M = mfmas(ks, dft, opt)
        R = reads(ks ^ 1, ks ^ 1)
        gaps = [[] for _ in range(32)]
        for i in range(16): gaps[i].append(R[i])
        if ks == 0:
            pre = "s_waitcnt lgkmcnt(0)"
            gaps[15].append(f"s_add_u32 m0, s{sC}, s{sWB}")
            for j in range(4): gaps[16+4*j].append(dmaB(j))
            gaps[17].append(f"s_add_u32 s60, s{sC}, 32768\ns_cmp_ge_u32 s60, 98304\ns_cselect_b32 s{sC}, 0, s60")
            gaps[18].append(f"s_add_u32 s60, s{sC}, 32768\ns_cmp_ge_u32 s60, 98304\ns_cselect_b32 s61, 0, s60")
            gaps[21].append(f"v_xor_b32 v{VAR}, 0x8000, v{VAR}"); gaps[22].append(f"v_xor_b32 v{VAR+1}, 0x8000, v{VAR+1}")
            gaps[25].append(f"v_add_u32 v{VBR}, s61, v{VBR0}"); gaps[26].append(f"v_add_u32 v{VBR+1}, s61, v{VBR0+1}")
            gaps[29].append(f"s_add_u32 s{sKB}, s{sKB}, s{sSTEP}\ns_add_u32 s{sKA}, s{sKA}, 128")
        else:
            pre = "s_waitcnt vmcnt(4) lgkmcnt(0)\ns_barrier"
            gaps[14].append(f"s_cmp_ge_u32 s{sN}, 14\ns_cselect_b32 s{SA+2}, 0, s{SA+2}")
            gaps[15].append(f"s_mov_b32 m0, s{sMA}")
            for j in range(4): gaps[16+4*j].append(dmaA(j))
            gaps[17].append(f"s_cmp_ge_u32 s{sN}, 13\ns_cselect_b32 s{SB0+2}, 0, s{SB0+2}\ns_cselect_b32 s{SB1+2}, 0, s{SB1+2}")
            gaps[31].append(f"s_xor_b32 s{sMA}, s{sMA}, 0x8000\ns_add_u32 s{sN}, s{sN}, 1\ns_cmp_lt_u32 s{sN}, 16")
        o(pre)
        for i in range(32):
            o(M[i])
            for g in gaps[i]: o(g)
    o(f"s_cbranch_scc1 L_loop_{tag}\ns_waitcnt lgkmcnt(0)")

def prefetch_wd(o, opt):
    if not opt.get("pfwd", 1): return
    srd(o, SM1, 20, 21, F*D*2)
    o(f"s_mul_i32 s60, s2, 28672\ns_mul_i32 s61, s{sW}, 3584\ns_add_u32 s60, s60, s61\nv_lshlrev_b32 v{VPF}, 7, v2")
    o(f"s_mov_b64 exec, 0xfffffff\nbuffer_load_dword v{VPF+1}, v{VPF}, s[{SM1}:{SM1+3}], s60 offen\ns_mov_b64 exec, -1")

def gen_p1(opt):
    o = Asm()
    name = "p1_kernel"
    o(f".globl {name}\n.p2align 8\n.type {name},@function\n{name}:")
    o("s_cmp_ge_u32 s2, 256\ns_cbranch_scc1 L_p1_end")
    stamp(o, opt, 0)
    o("s_load_dwordx2 s[4:5], s[0:1], 0\ns_load_dwordx4 s[8:11], s[0:1], 24\ns_load_dwordx4 s[12:15], s[0:1], 48")
    o("s_load_dwordx4 s[20:23], s[0:1], 64\ns_load_dwordx2 s[18:19], s[0:1], 96")
    o(f"v_lshrrev_b32 v1, 6, v0\nv_and_b32 v2, 63, v0\ns_nop 0\nv_readfirstlane_b32 s{sW}, v1")
    o("s_and_b32 s60, s2, 7\ns_lshr_b32 s61, s2, 3")
    if opt.get("map1", "m8") == "m8":
        o(f"s_and_b32 s{sMB_}, s61, 7\ns_lshr_b32 s62, s61, 3\ns_lshl_b32 s{sNB}, s60, 2\ns_add_u32 s{sNB}, s{sNB}, s62")
    elif opt["map1"] == "m4":
        o(f"s_and_b32 s62, s60, 1\ns_lshl_b32 s62, s62, 2\ns_and_b32 s63, s61, 3\ns_add_u32 s{sMB_}, s62, s63")
        o(f"s_lshr_b32 s62, s60, 1\ns_lshr_b32 s63, s61, 2\ns_mul_i32 s{sNB}, s62, 7\ns_add_u32 s{sNB}, s{sNB}, s63\ns_add_u32 s64, s62, 28\ns_cmp_eq_u32 s63, 7\ns_cselect_b32 s{sNB}, s64, s{sNB}")
    elif opt["map1"] == "m2":
        o(f"s_lshr_b32 s62, s60, 1\ns_lshl_b32 s62, s62, 1\ns_and_b32 s63, s61, 1\ns_add_u32 s{sMB_}, s62, s63")
        o(f"s_and_b32 s62, s60, 1\ns_lshr_b32 s63, s61, 1\ns_mul_i32 s{sNB}, s62, 14\ns_add_u32 s{sNB}, s{sNB}, s63\ns_lshl_b32 s64, s62, 1\ns_add_u32 s64, s64, s63\ns_add_u32 s64, s64, 14\ns_cmp_ge_u32 s63, 14\ns_cselect_b32 s{sNB}, s64, s{sNB}")
    o(f"s_cmp_ge_u32 s{sNB}, 28\ns_cselect_b32 s{sDFT}, 1, 0\ns_cbranch_scc1 L_p1_dft0")
    o(f"s_mov_b32 s{sSTR}, 7168\ns_lshl_b32 s65, s{sNB}, 8")
    o(f"s_lshl_b32 s66, s{sMB_}, 8\ns_lshl_b32 s67, s{sW}, 5\ns_add_u32 s66, s66, s67\ns_lshl_b32 s66, s66, 11")
    o("s_mov_b32 s67, 11\ns_mov_b32 s68, %d\ns_mov_b32 s69, %d" % (16384 - 1024, D*F*2))
    o("s_branch L_p1_setup2\nL_p1_dft0:")
    o(f"s_mov_b32 s{sSTR}, 2048\ns_sub_u32 s{sNB}, s{sNB}, 28\ns_lshl_b32 s65, s{sNB}, 8")
    o(f"s_lshl_b32 s66, s{sMB_}, 3\ns_add_u32 s66, s66, s{sW}\ns_lshl_b32 s66, s66, 11")
    o("s_mov_b32 s67, 17\ns_mov_b32 s68, %d\ns_mov_b32 s69, %d" % (1048576 - 1024, D*D*2))
    o("L_p1_setup2:")
    o("v_lshrrev_b32 v4, 3, v2\nv_lshlrev_b32 v4, s67, v4\nv_add_u32 v4, s66, v4")
    o("v_and_b32 v5, 7, v2\nv_lshrrev_b32 v6, 4, v2\nv_xor_b32 v5, v5, v6")
    o("v_xor_b32 v7, 4, v5\nv_lshlrev_b32 v5, 4, v5\nv_lshlrev_b32 v7, 4, v7")
    o(f"v_add_u32 v{VAD}, v4, v5\nv_add_u32 v4, s68, v4\nv_add_u32 v{VAD+1}, v4, v7\nv_add_u32 v4, s68, v4\nv_add_u32 v{VAD+2}, v4, v5\nv_add_u32 v4, s68, v4\nv_add_u32 v{VAD+3}, v4, v7")
    o(f"s_lshl_b32 s66, s{sW}, 3\nv_add_u32 v5, s66, v6\nv_mul_lo_u32 v5, v5, s{sSTR}\ns_and_b32 s66, s{sW}, 1\ns_lshl_b32 s66, s66, 1")
    o("v_lshlrev_b32 v4, 2, v6\nv_and_b32 v6, 15, v2\nv_xor_b32 v4, v4, v6\nv_xor_b32 v4, s66, v4\nv_lshlrev_b32 v4, 4, v4\nv_add_u32 v5, v5, v4")
    o(f"v_add_u32 v{VBD}, s65, v5\ns_lshl_b32 s66, s{sSTR}, 2\ns_sub_u32 s66, s66, 1024\nv_add_u32 v{VBD+1}, s66, v{VBD}")
    o(f"s_lshl_b32 s{sSTEP}, s{sSTR}, 6\ns_lshl_b32 s66, s{sW}, 12\ns_add_u32 s{sWB}, s66, 65536")
    o(f"s_mov_b32 s{sKA}, 0\ns_mov_b32 s{sKB}, 0\ns_mov_b32 m0, s66")
    o("s_waitcnt lgkmcnt(0)")
    srd(o, SA, 4, 5, S*D*2)
    for j in range(4): o(dmaA(j))
    o(f"s_cmp_eq_u32 s{sDFT}, 1\ns_cselect_b32 s{SB0}, s8, s12\ns_cselect_b32 s{SB0+1}, s9, s13\ns_cselect_b32 s{SB1}, s10, s14\ns_cselect_b32 s{SB1+1}, s11, s15")
    o(f"s_and_b32 s{SB0+1}, s{SB0+1}, 0xffff\ns_and_b32 s{SB1+1}, s{SB1+1}, 0xffff\ns_sub_u32 s{SB1}, s{SB1}, 2048\ns_subb_u32 s{SB1+1}, s{SB1+1}, 0")
    o(f"s_mov_b32 s{SB0+2}, s69\ns_add_u32 s{SB1+2}, s69, 2048\ns_mov_b32 s{SB0+3}, 0x20000\ns_mov_b32 s{SB1+3}, 0x20000\ns_mov_b32 m0, s{sWB}\ns_nop 0")
    for j in range(4): o(dmaB(j))
    srd(o, SWS, 18, 19, WS_SIZE)
    srd(o, SM1, 22, 23, D*2)
    srd(o, SM2, 8, 9, D*D*2)
    o(f"s_lshl_b32 s70, s2, 3\ns_add_u32 s70, s70, s{sW}\ns_lshl_b32 s63, s70, 11\nv_lshlrev_b32 v3, 4, v2\ns_mov_b32 s64, {512*2048}")
    o(f"buffer_load_dwordx4 v[64:67], v3, s[{SA}:{SA+3}], s63 offen\nbuffer_load_dwordx4 v[68:71], v3, s[{SA}:{SA+3}], s63 offen offset:1024")
    o(f"buffer_load_dwordx4 v[72:75], v3, s[{SM1}:{SM1+3}], 0 offen\nbuffer_load_dwordx4 v[76:79], v3, s[{SM1}:{SM1+3}], 0 offen offset:1024")
    o(f"buffer_load_dwordx4 v[80:83], v3, s[{SM2}:{SM2+3}], s64 offen\nbuffer_load_dwordx4 v[84:87], v3, s[{SM2}:{SM2+3}], s64 offen offset:1024")
    o(f"s_add_u32 m0, s66, 32768\ns_mov_b32 s{sKA}, 128\ns_mov_b32 s{sKB}, s{sSTEP}")
    for j in range(4): o(dmaA(j))
    o(f"s_add_u32 m0, s{sWB}, 32768\ns_nop 0")
    for j in range(4): o(dmaB(j))
    o(f"s_add_u32 s{sKB}, s{sKB}, s{sSTEP}\ns_mov_b32 s{sMA}, s66\ns_mov_b32 s{sC}, 65536\ns_mov_b32 s{sN}, 0")
    o(f"s_lshr_b32 s66, s{sW}, 2\ns_lshl_b32 s66, s66, 14\nv_and_b32 v4, 15, v2\nv_lshlrev_b32 v5, 7, v4\nv_add_u32 v5, s66, v5")
    o("v_lshrrev_b32 v6, 1, v4\nv_lshrrev_b32 v7, 4, v2\nv_xor_b32 v6, v6, v7")
    o(f"v_lshlrev_b32 v6, 4, v6\nv_add_u32 v{VAR}, v5, v6\nv_xor_b32 v{VAR+1}, 64, v{VAR}")
    o(f"s_and_b32 s66, s{sW}, 3\nv_lshrrev_b32 v4, 2, v2\nv_and_b32 v4, 3, v4\nv_xor_b32 v5, s66, v4\nv_lshlrev_b32 v5, 6, v5\nv_lshlrev_b32 v4, 8, v4\nv_add_u32 v4, v4, v5")
    o("v_lshlrev_b32 v5, 12, v7\nv_add_u32 v4, v4, v5\nv_and_b32 v5, 16, v2\nv_lshlrev_b32 v5, 1, v5\nv_add_u32 v4, v4, v5")
    o(f"v_and_b32 v5, 3, v2\nv_lshlrev_b32 v5, 3, v5\nv_add_u32 v4, v4, v5\nv_add_u32 v{VBR0}, 0x10000, v4\nv_xor_b32 v{VBR0+1}, 32, v{VBR0}\nv_mov_b32 v{VBR}, v{VBR0}\nv_mov_b32 v{VBR+1}, v{VBR0+1}")
    for i in range(128): o(f"v_mov_b32 v{ACC+i}, 0")
    o("s_waitcnt vmcnt(14)\ns_barrier")
    stamp(o, opt, 1)
    for r in reads(0, 0): o(r)
    o("s_waitcnt vmcnt(8)\nv_mov_b32 v14, 0\nv_mov_b32 v15, 0")
    for i in range(8):
        x, g, d = 64+i, 72+i, 80+i
        o(f"v_lshlrev_b32 v4, 16, v{x}\nv_and_b32 v5, 0xffff0000, v{x}\nv_lshlrev_b32 v6, 16, v{g}\nv_and_b32 v7, 0xffff0000, v{g}")
        o(f"v_lshlrev_b32 v8, 16, v{d}\nv_and_b32 v9, 0xffff0000, v{d}\nv_mul_f32 v6, v4, v6\nv_mul_f32 v7, v5, v7")
        o(f"v_fmac_f32 v15, v4, v8\nv_cvt_pk_bf16_f32 v6, v6, v7\nv_fmac_f32 v15, v5, v9")
        o(f"v_lshlrev_b32 v7, 16, v6\nv_and_b32 v6, 0xffff0000, v6\nv_add_f32 v14, v14, v7\nv_add_f32 v14, v14, v6")
    for dpp in ["quad_perm:[1,0,3,2]", "quad_perm:[2,3,0,1]", "row_half_mirror", "row_mirror"]:
        o(f"s_nop 1\nv_add_f32_dpp v14, v14, v14 {dpp} row_mask:0xf bank_mask:0xf\nv_add_f32_dpp v15, v15, v15 {dpp} row_mask:0xf bank_mask:0xf")
    o("s_nop 1")
    for i in range(4): o(f"v_readlane_b32 s{72+i}, v14, {16*i}\nv_readlane_b32 s{76+i}, v15, {16*i}")
    o("s_nop 1\nv_mov_b32 v14, s72\nv_mov_b32 v15, s76")
    for i in range(1, 4): o(f"v_add_f32 v14, s{72+i}, v14\nv_add_f32 v15, s{76+i}, v15")
    o("v_cvt_pk_bf16_f32 v14, v14, v14\nv_cvt_pk_bf16_f32 v15, v15, v15\nv_lshlrev_b32 v14, 16, v14")
    o(f"v_mul_f32 v14, {hx(f2u(-math.log2(math.e)))}, v14\nv_exp_f32 v14, v14\ns_nop 0\nv_add_f32 v14, 1.0, v14\nv_rcp_f32 v14, v14\ns_nop 0")
    o("v_cvt_pk_bf16_f32 v14, v14, v14\nv_lshlrev_b32 v14, 16, v14")
    o(f"s_lshl_b32 s72, s70, 2\ns_add_u32 s72, s72, {hx(WS_G)}")
    o("s_and_b32 s73, s70, 63\ns_lshl_b32 s73, s73, 6\ns_lshr_b32 s74, s70, 6")
    o("s_and_b32 s75, s74, 3\ns_and_b32 s76, s74, 12\ns_lshl_b32 s76, s76, 1\ns_or_b32 s75, s75, s76\ns_and_b32 s76, s74, 16\ns_lshr_b32 s76, s76, 2\ns_or_b32 s75, s75, s76")
    o(f"s_lshl_b32 s75, s75, 1\ns_add_u32 s73, s73, s75\ns_add_u32 s73, s73, {hx(WS_Z + 512*8192)}")
    o(f"s_lshl_b32 s74, s2, 7\ns_add_u32 s74, s74, {hx(WS_FL)}\nv_mov_b32 v13, 0")
    o("s_mov_b64 exec, 1")
    o(f"buffer_store_dword v14, v13, s[{SWS}:{SWS+3}], s72 offen\nbuffer_store_short v15, v13, s[{SWS}:{SWS+3}], s73 offen\nbuffer_store_dword v13, v13, s[{SWS}:{SWS+3}], s74 offen")
    o("s_mov_b64 exec, -1")
    o(f"s_cmp_eq_u32 s{sDFT}, 1\ns_cbranch_scc1 L_loop_dft")
    mainloop(o, False, "ffn", opt)
    stamp(o, opt, 2)
    prefetch_wd(o, opt)
    c0 = -2.0 * math.sqrt(2.0/math.pi) * math.log2(math.e); c1 = c0 * 0.044715
    o(f"v_mov_b32 v14, {hx(f2u(c0))}\ns_mov_b32 s60, {hx(f2u(c1))}")
    o(f"s_and_b32 s61, s{sW}, 3\ns_lshr_b32 s62, s61, 1\ns_lshl_b32 s63, s{sNB}, 1\ns_add_u32 s62, s62, s63\ns_lshl_b32 s62, s62, 18")
    o(f"s_and_b32 s61, s61, 1\ns_lshl_b32 s61, s61, 10\ns_add_u32 s62, s62, s61\ns_lshl_b32 s63, s{sMB_}, 15\ns_add_u32 s62, s62, s63\ns_lshr_b32 s63, s{sW}, 2\ns_lshl_b32 s63, s63, 14\ns_add_u32 s62, s62, s63")
    o(f"s_add_u32 s62, s62, {hx(WS_H)}\nv_lshlrev_b32 v15, 4, v2\ns_nop 3")
    for mt in range(8):
        G = acc(mt, 0); U = acc(mt, 2)
        T = 16 + 16 * (mt & 1); P = 48 + 4 * (mt & 3)
        for i in range(8): o(f"v_mul_f32 v{T+i}, v{G+i}, v{G+i}")
        for i in range(8): o(f"v_fma_f32 v{T+i}, v{T+i}, s60, v14")
        for i in range(8): o(f"v_mul_f32 v{T+i}, v{T+i}, v{G+i}")
        for i in range(8): o(f"v_exp_f32 v{T+i}, v{T+i}")
        for i in range(8): o(f"v_mul_f32 v{T+8+i}, v{G+i}, v{U+i}")
        for i in range(8): o(f"v_add_f32 v{T+i}, 1.0, v{T+i}")
        for i in range(8): o(f"v_rcp_f32 v{T+i}, v{T+i}")
        o("s_nop 0")
        for i in range(8): o(f"v_mul_f32 v{T+i}, v{T+i}, v{T+8+i}")
        for i in range(4): o(f"v_cvt_pk_bf16_f32 v{P+i}, v{T+2*i}, v{T+2*i+1}")
        o(f"buffer_store_dwordx4 {vr(P,4)}, v15, s[{SWS}:{SWS+3}], s62 offen offset:{(mt&1)*2048} {opt.get('hst','')}")
        if mt & 1: o("s_add_u32 s62, s62, 4096")
    stamp_out(o, opt, 0, sW, SWS, 4)
    o("s_endpgm")
    mainloop(o, True, "dft", opt)
    stamp(o, opt, 2)
    prefetch_wd(o, opt)
    o(f"s_and_b32 s61, s{sW}, 3\ns_lshl_b32 s61, s61, 5\ns_lshl_b32 s62, s{sNB}, 7\ns_add_u32 s61, s61, s62\nv_and_b32 v4, 15, v2\nv_add_u32 v4, s61, v4\nv_lshlrev_b32 v4, 13, v4")
    o(f"v_and_b32 v5, 48, v2\nv_add_u32 v15, v4, v5")
    o(f"s_lshl_b32 s62, s{sMB_}, 9\ns_lshr_b32 s63, s{sW}, 2\ns_lshl_b32 s63, s63, 8\ns_add_u32 s62, s62, s63\ns_add_u32 s62, s62, {hx(WS_Z)}")
    o(f"s_add_u32 s63, s62, {16*8192}\ns_add_u32 s64, s62, 4096\ns_add_u32 s65, s63, 4096\ns_nop 3")
    n = 0
    for nt in range(4):
        for u in range(4):
            A0 = acc(2*u, nt); A1 = acc(2*u+1, nt); P = 16 + 4*(n & 7); n += 1
            o(f"v_cvt_pk_bf16_f32 v{P}, v{A0}, v{A0+1}\nv_cvt_pk_bf16_f32 v{P+1}, v{A0+2}, v{A0+3}\nv_cvt_pk_bf16_f32 v{P+2}, v{A1}, v{A1+1}\nv_cvt_pk_bf16_f32 v{P+3}, v{A1+2}, v{A1+3}")
            o(f"buffer_store_dwordx4 {vr(P,4)}, v15, s[{SWS}:{SWS+3}], s{62+nt} offen offset:{u*64} {opt.get('hst','')}")
    stamp_out(o, opt, 0, sW, SWS, 4)
    o("L_p1_end:\ns_endpgm")
    return o.text(), kd(name, 256)
```

```python
from common import *
import math
NST = 5
NK = 28
SH, SWD, SWS, SOUT, SDBG = 24, 28, 32, 36, 40
sW, sPB, sET, sKH_, sN, sST, sK1, sK2, sLB = 48, 49, 50, 51, 52, 53, 54, 55, 56
ACC = 192
SETS = [128, 160]
VHR, VWR, VHB, VWB = 116, 117, 121, 122

def c_reads(st, kap):
    b = SETS[st]
    def w(u, rd): return f"ds_read_b64_tr_b16 {vr(b+16+4*u+2*rd,2)}, v{VWR+u} offset:{kap*8192+rd*4096}"
    def h(p): return f"ds_read_b128 {vr(b+4*p,4)}, v{VHR} offset:{p*2048+kap*1024}"
    return [w(0,0), w(0,1), h(0), w(1,0), w(1,1), h(1), w(2,0), w(2,1), h(2), w(3,0), w(3,1), h(3)]
def c_mfmas(st):
    b = SETS[st]; r = []
    for (p, u) in [(0,0),(0,1),(1,1),(1,0),(2,0),(2,1),(2,2),(1,2),(0,2),(0,3),(1,3),(2,3),(3,3),(3,2),(3,1),(3,0)]:
        A = vr(ACC + (p*4+u)*4, 4)
        r.append(f"v_mfma_f32_16x16x32_bf16 {A}, {vr(b+16+4*u,4)}, {vr(b+4*p,4)}, {A}")
    return r

def fft(o):
    ZA, ZB, C1, S1, N1 = 8, 24, 40, 48, 56
    U, TW, C3 = 64, 128, 192
    o(f"v_and_b32 v3, 31, v2\nv_lshrrev_b32 v4, 5, v2\nv_lshlrev_b32 v5, 6, v3\nv_lshlrev_b32 v6, 4, v4\nv_add_u32 v5, v5, v6")
    o(f"s_lshl_b32 s61, s60, 13\ns_add_u32 s61, s61, {hx(WS_Z)}\ns_add_u32 s62, s61, 4096")
    for part in range(2):
        for tile in range(2):
            for kap in range(2):
                o(f"buffer_load_dwordx4 {vr((ZA,ZB)[part]+(tile*2+kap)*4,4)}, v5, s[{SWS}:{SWS+3}], s{61+part} offen offset:{tile*2048+kap*32}")
    o("v_cvt_f32_u32 v210, v3\nv_cvt_f32_u32 v211, v4\nv_and_b32 v212, 1, v2\nv_mul_u32_u24 v212, 0x8000, v212\nv_mul_u32_u24 v212, 0x10001, v212")
    o("v_mul_f32 v211, v210, v211")
    def base(scale): o(f"v_mul_f32 v213, {hx(f2u(4.0*scale))}, v211")
    def cs(dc, ds, cst, scale, tmp):
        o(f"v_fmamk_f32 v{tmp}, v210, {hx(f2u(cst*scale))}, v213\nv_fract_f32 v{tmp}, v{tmp}")
        o(f"v_cos_f32 v{dc}, v{tmp}\nv_sin_f32 v{ds}, v{tmp}")
    def slot(j): return 8*(j >> 2) + (j & 3)
    base(1/32.)
    for j in range(8): cs(U+j, U+8+j, slot(j), 1/32., 214 + (j & 3))
    o("s_nop 0")
    for kap in range(2):
        for i in range(2):
            o(f"v_cvt_pk_bf16_f32 v{C1+4*kap+i}, v{U+4*kap+2*i}, v{U+4*kap+2*i+1}\nv_cvt_pk_bf16_f32 v{S1+4*kap+i}, v{U+8+4*kap+2*i}, v{U+8+4*kap+2*i+1}")
        for i in range(2):
            o(f"v_xor_b32 v{C1+4*kap+2+i}, v{C1+4*kap+i}, v212\nv_xor_b32 v{S1+4*kap+2+i}, v{S1+4*kap+i}, v212")
    for i in range(8): o(f"v_xor_b32 v{N1+i}, 0x80008000, v{S1+i}")
    base(1/64.)
    for kp in range(2):
        for j in range(8): cs(U+j, U+8+j, 16*kp + slot(j), 1/64., 214 + (j & 3))
        o("s_nop 0")
        for i in range(4):
            o(f"v_cvt_pk_bf16_f32 v{C3+4*kp+i}, v{U+2*i}, v{U+2*i+1}\nv_cvt_pk_bf16_f32 v{C3+8+4*kp+i}, v{U+8+2*i}, v{U+8+2*i+1}")
    base(1/2048.)
    for tile in range(2):
        for r in range(16):
            c = 32*tile + 8*(r >> 2) + (r & 3); t = 214 + (r & 3)
            o(f"v_fmamk_f32 v{t}, v210, {hx(f2u(c/2048.))}, v213\nv_cos_f32 v{TW+tile*16+r}, v{t}\nv_sin_f32 v{TW+32+tile*16+r}, v{t}")
    o("s_waitcnt vmcnt(0)")
    o("s_cmp_lg_u32 s60, 512\ns_cbranch_scc1 L_fft_nz")
    for i in range(16): o(f"v_mov_b32 v{ZB+i}, 0")
    o("L_fft_nz:\ns_nop 1")
    mf = "v_mfma_f32_32x32x16_bf16"
    for kap in range(2):
        for tile in range(2):
            za = vr(ZA+(tile*2+kap)*4, 4); zb = vr(ZB+(tile*2+kap)*4, 4)
            re = vr(U+tile*16, 16); im = vr(U+32+tile*16, 16)
            c0r = re if kap else "0"; c0i = im if kap else "0"
            o(f"{mf} {re}, {za}, {vr(C1+4*kap,4)}, {c0r}\n{mf} {im}, {zb}, {vr(C1+4*kap,4)}, {c0i}")
            o(f"{mf} {re}, {zb}, {vr(S1+4*kap,4)}, {re}\n{mf} {im}, {za}, {vr(N1+4*kap,4)}, {im}")
    C3X = 220
    for part in range(2):
        for kp in range(2):
            for i in range(4): o(f"v_xor_b32 v{C3X+8*part+4*kp+i}, v{C3+8*part+4*kp+i}, v212")
    def c3(part, kp): return (C3 if kp < 2 else C3X) + 8*part + 4*(kp & 1)
    for i in range(0, 32, 2):
        for d in range(2):
            k = i + d
            o(f"v_mul_f32 v{214+d}, v{U+k}, v{TW+k}\nv_mul_f32 v{216+d}, v{U+32+k}, v{TW+k}")
        for d in range(2):
            k = i + d
            o(f"v_fmac_f32 v{214+d}, v{U+32+k}, v{TW+32+k}\nv_fma_f32 v{216+d}, -v{U+k}, v{TW+32+k}, v{216+d}")
        o(f"v_cvt_pk_bf16_f32 v{8+i//2}, v214, v215\nv_cvt_pk_bf16_f32 v{24+i//2}, v216, v217")
    o("s_nop 1")
    first = True
    for kp in range(4):
        for part in range(2):
            Y = vr(U, 16)
            o(f"{mf} {Y}, {vr(c3(part,kp),4)}, {vr(8+16*part+4*kp,4)}, {'0' if first else Y}")
            first = False
            for i in range(4): o(f"v_xor_b32 v{TW+(kp*2+part)*4+i}, 0x80000000, v{c3(part,kp)+i}")
    o("s_nop 1")
    first = True
    for kp in range(4):
        for part in range(2):
            Y = vr(U+16, 16)
            o(f"{mf} {Y}, {vr(TW+(kp*2+part)*4,4)}, {vr(8+16*part+4*kp,4)}, {'0' if first else Y}")
            first = False
    o("v_lshlrev_b32 v5, 2, v3\nv_lshlrev_b32 v6, 9, v4\nv_add_u32 v5, v5, v6")
    o(f"s_lshl_b32 s61, s60, 13\ns_add_u32 s61, s61, {hx(WS_YT)}\ns_add_u32 s62, s61, 4096")
    for T in range(2):
        if T: o("s_nop 7")
        for r in range(16):
            o(f"buffer_store_dword v{U+16*T+r}, v5, s[{SWS}:{SWS+3}], s{61+T} offen offset:{(8*(r>>2)+(r&3))*128} sc1")

def gen_p2(opt):
    o = Asm()
    name = "p2_kernel"
    o(f".globl {name}\n.p2align 8\n.type {name},@function\n{name}:")
    o("s_cmp_ge_u32 s2, 256\ns_cbranch_scc1 L_p2_end")
    stamp(o, opt, 0)
    if opt.get("stamp"): o("s_mov_b64 s[84:85], 0\ns_mov_b64 s[86:87], 0\ns_mov_b64 s[88:89], 0\ns_mov_b64 s[90:91], 0\ns_mov_b64 s[92:93], 0\ns_mov_b64 s[94:95], 0")
    o("s_load_dwordx2 s[4:5], s[0:1], 64\ns_load_dwordx4 s[8:11], s[0:1], 80\ns_load_dwordx2 s[12:13], s[0:1], 96")
    o(f"v_lshrrev_b32 v1, 6, v0\nv_and_b32 v2, 63, v0\ns_nop 0\nv_readfirstlane_b32 s{sW}, v1")
    o(f"s_and_b32 s60, s2, 7\ns_lshr_b32 s61, s2, 3\ns_lshr_b32 s62, s60, 1\ns_lshl_b32 s62, s62, 2\ns_lshr_b32 s63, s61, 3\ns_add_u32 s{sPB}, s62, s63")
    o(f"s_and_b32 s{sET}, s61, 7\ns_and_b32 s{sKH_}, s60, 1")
    o(f"s_cmp_lt_u32 s{sW}, 4\ns_cbranch_scc1 L_p2_cons")
    VH, VWD = 10, 12
    o(f"s_sub_u32 s60, s{sW}, 4\ns_mul_i32 s61, s{sKH_}, {NK*262144}\ns_lshl_b32 s62, s{sPB}, 14\ns_add_u32 s61, s61, s62\ns_lshl_b32 s{sLB}, s60, 12\ns_add_u32 s61, s61, s{sLB}")
    o(f"v_lshlrev_b32 v3, 4, v2\nv_add_u32 v{VH}, s61, v3")
    o(f"v_lshrrev_b32 v4, 4, v2\nv_lshlrev_b32 v5, 11, v4\nv_lshlrev_b32 v4, 1, v4\nv_and_b32 v6, 15, v2\nv_xor_b32 v4, v4, v6\nv_lshlrev_b32 v4, 4, v4")
    o(f"s_mul_i32 s61, s{sKH_}, {1792*2048}\ns_lshl_b32 s62, s{sET}, 8\ns_add_u32 s61, s61, s62\ns_lshl_b32 s62, s60, 15\ns_add_u32 s61, s61, s62\nv_add_u32 v5, s61, v5")
    o(f"v_add_u32 v{VWD}, v5, v4\nv_xor_b32 v4, 0x80, v4\nv_add_u32 v{VWD+1}, v5, v4\nv_add_u32 v{VWD+1}, {8192-1024}, v{VWD+1}")
    o(f"v_add_u32 v{VWD+2}, {2*(8192-1024)}, v{VWD}\nv_add_u32 v{VWD+3}, {2*(8192-1024)}, v{VWD+1}")
    o(f"s_mov_b32 s{sK1}, 0\ns_mov_b32 s{sK2}, 0\ns_mov_b32 s{sST}, 0\ns_mov_b32 s{sN}, 0")
    o("s_waitcnt lgkmcnt(0)")
    srd(o, SWD, 4, 5, F*D*2)
    srd(o, SWS, 12, 13, WS_SIZE)
    def issue():
        o(f"s_add_u32 m0, s{sST}, s{sLB}\ns_nop 0")
        for j in range(4): o(f"buffer_load_dwordx4 v{VH}, s[{SWS}:{SWS+3}], s{sK1} offen offset:{j*1024} lds")
        o(f"s_add_u32 m0, m0, 16384\ns_nop 0")
        for j in range(4): o(f"buffer_load_dwordx4 v{VWD+j}, s[{SWD}:{SWD+3}], s{sK2} offen offset:{j*1024} lds")
        o(f"s_add_u32 s{sK1}, s{sK1}, 262144\ns_add_u32 s{sK2}, s{sK2}, 131072")
        o(f"s_add_u32 s{sST}, s{sST}, 32768\ns_cmp_ge_u32 s{sST}, {NST*32768}\ns_cselect_b32 s{sST}, 0, s{sST}")
    o("L_p2_lpro:"); issue()
    o(f"s_add_u32 s{sN}, s{sN}, 1\ns_cmp_lt_u32 s{sN}, {NST-1}\ns_cbranch_scc1 L_p2_lpro")
    srd(o, SOUT, 8, 9, S*D*2)
    srd(o, SDBG, 10, 11, 256)
    o(f"s_mov_b32 s{sN}, 0\nL_p2_lloop:\ns_waitcnt vmcnt({8*(NST-2)})\ns_barrier")
    issue()
    o(f"s_add_u32 s{sN}, s{sN}, 1\ns_cmp_lt_u32 s{sN}, {NK-(NST-1)}\ns_cbranch_scc1 L_p2_lloop")
    o(f"v_mov_b32 v9, 0\nbuffer_load_dword v10, v9, s[{SDBG}:{SDBG+3}], 0 offen sc1")
    o(f"s_lshl_b32 s63, s{sPB}, 7\ns_lshl_b32 s64, s60, 5\ns_add_u32 s63, s63, s64\nv_and_b32 v4, 15, v2\nv_add_u32 v4, s63, v4\nv_lshrrev_b32 v5, 4, v2")
    o(f"s_lshl_b32 s64, s{sET}, 7\ns_lshl_b32 s65, s{sKH_}, 6\ns_add_u32 s64, s64, s65")
    o("v_lshlrev_b32 v6, 2, v4\nv_lshlrev_b32 v7, 15, v5\ns_cmp_ge_u32 s64, 512\ns_cbranch_scc1 L_p2_mir")
    o(f"v_add_u32 v12, v6, v7\nv_add_u32 v13, 64, v12\ns_lshl_b32 s66, s64, 13\ns_mov_b32 s67, 8192\ns_branch L_p2_mird\nL_p2_mir:")
    o(f"v_sub_u32 v12, 0x800, v4\nv_subrev_u32 v13, 16, v12\nv_and_b32 v12, 0x7ff, v12\nv_lshlrev_b32 v12, 2, v12\nv_lshlrev_b32 v13, 2, v13\nv_sub_u32 v7, 0x18000, v7\nv_add_u32 v12, v12, v7\nv_add_u32 v13, v13, v7")
    o(f"s_sub_u32 s66, 1012, s64\ns_lshl_b32 s66, s66, 13\ns_mov_b32 s67, -8192\nL_p2_mird:\ns_add_u32 s66, s66, {hx(WS_YT)}")
    for m in range(NK-(NST-1), NK):
        o(f"s_waitcnt vmcnt({8*(NK-1-m)+1})\ns_barrier")
    o(f"L_p2_poll1:\ns_waitcnt vmcnt(0)\nv_readfirstlane_b32 s68, v10\ns_nop 3\ns_cmp_ge_u32 s68, 256\ns_cbranch_scc1 L_p2_poll1d\ns_sleep 1\nbuffer_load_dword v10, v9, s[{SDBG}:{SDBG+3}], 0 offen sc1\ns_branch L_p2_poll1\nL_p2_poll1d:")
    o(f"s_mov_b32 s68, {hx(WS_G)}\nbuffer_load_dword v14, v6, s[{SWS}:{SWS+3}], s68 offen\nbuffer_load_dword v15, v6, s[{SWS}:{SWS+3}], s68 offen offset:64")
    Y0 = 32
    for u in range(4):
        for r in range(4):
            o(f"s_mul_i32 s68, s67, {16*u+r}\ns_add_u32 s68, s68, s66")
            for a in range(2): o(f"buffer_load_dword v{Y0+(a*4+u)*4+r}, v{12+a}, s[{SWS}:{SWS+3}], s68 offen sc1")
    o("s_barrier")
    o("v_lshlrev_b32 v6, 11, v4\nv_and_b32 v7, 16, v2\nv_lshlrev_b32 v7, 1, v7\nv_add_u32 v6, v6, v7\nv_lshrrev_b32 v7, 5, v2\nv_lshlrev_b32 v7, 4, v7\nv_add_u32 v6, v6, v7\ns_lshl_b32 s64, s64, 1\ns_add_u32 s65, s64, 32768")
    o(f"s_lshl_b32 s62, s60, 13\nv_lshlrev_b32 v3, 4, v2\nv_add_u32 v3, s62, v3\nv_add_u32 v8, 4096, v3")
    o("s_waitcnt vmcnt(0)")
    for a in range(2):
        o(f"v_sub_f32 v{16+a}, 1.0, v{14+a}\nv_cvt_pk_bf16_f32 v{16+a}, v{16+a}, v{16+a}\nv_lshlrev_b32 v{16+a}, 16, v{16+a}")
        for i in range(16): o(f"v_mul_f32 v{Y0+16*a+i}, v{14+a}, v{Y0+16*a+i}")
    o(f"s_lshl_b32 s66, s2, 7\ns_add_u32 s66, s66, {hx(WS_FL)}")
    o("s_barrier")
    stamp(o, opt, 3)
    O0, X0 = 64, 96
    for i in range(8): o(f"ds_read_b128 {vr(O0+4*i,4)}, v3 offset:{i*1024}")
    o(f"L_p2_poll2:\nbuffer_load_dword v10, v9, s[{SWS}:{SWS+3}], s66 offen sc1\ns_waitcnt vmcnt(0)\nv_readfirstlane_b32 s67, v10\ns_nop 3\ns_cmp_eq_u32 s67, 1\ns_cbranch_scc1 L_p2_poll2d\ns_sleep 1\ns_branch L_p2_poll2\nL_p2_poll2d:")
    o(f"s_lshl_b32 s66, s2, 15\ns_add_u32 s66, s66, {hx(WS_XB)}")
    for i in range(8): o(f"buffer_load_dwordx4 {vr(X0+4*i,4)}, v{3 if i < 4 else 8}, s[{SWS}:{SWS+3}], s66 offen offset:{(i&3)*1024} sc1")
    o("s_waitcnt lgkmcnt(0)")
    for i in range(32): o(f"v_fmac_f32 v{Y0+i}, v{16+i//16}, v{O0+i}")
    for a in range(2):
        o(f"s_waitcnt vmcnt({4-4*a + 2*a})" if a == 0 else "s_waitcnt vmcnt(2)")
        for i in range(16): o(f"v_fmac_f32 v{Y0+16*a+i}, v{16+a}, v{X0+16*a+i}")
        P = 128 + 8*a
        for u in range(4):
            d = P + 4*(u >> 1) + 2*(u & 1)
            o(f"v_cvt_pk_bf16_f32 v{d}, v{Y0+16*a+4*u}, v{Y0+16*a+4*u+1}\nv_cvt_pk_bf16_f32 v{d+1}, v{Y0+16*a+4*u+2}, v{Y0+16*a+4*u+3}")
        o(f"s_nop 1\nv_permlane16_swap_b32 v{P}, v{P+2}\nv_permlane16_swap_b32 v{P+1}, v{P+3}\nv_permlane16_swap_b32 v{P+4}, v{P+6}\nv_permlane16_swap_b32 v{P+5}, v{P+7}")
        o(f"buffer_store_dwordx4 {vr(P,4)}, v6, s[{SOUT}:{SOUT+3}], s{64+a} offen\nbuffer_store_dwordx4 {vr(P+4,4)}, v6, s[{SOUT}:{SOUT+3}], s{64+a} offen offset:64")
    stamp_out(o, opt, 1, sW, SWS, 5)
    o("s_endpgm")
    o("L_p2_cons:\ns_waitcnt lgkmcnt(0)")
    srd(o, SWS, 12, 13, WS_SIZE)
    srd(o, SDBG, 10, 11, 256)
    o(f"s_lshl_b32 s60, s2, 1\ns_add_u32 s60, s60, s{sW}\ns_cmp_lt_u32 s{sW}, 2\ns_cbranch_scc1 L_p2_fft")
    o(f"s_mov_b32 s60, 512\ns_lshl_b32 s61, s2, 2\ns_add_u32 s61, s61, s{sW}\ns_cmp_lg_u32 s61, 2\ns_cbranch_scc1 L_p2_nofft")
    o("L_p2_fft:")
    fft(o)
    o("L_p2_nofft:")
    o(f"s_and_b32 s60, s{sW}, 1\ns_lshl_b32 s60, s60, 13\nv_lshlrev_b32 v3, 4, v2\nv_add_u32 v{VHB}, s60, v3")
    o(f"s_lshr_b32 s61, s{sW}, 1\ns_lshl_b32 s61, s61, 2\nv_lshrrev_b32 v4, 2, v2\nv_and_b32 v5, 7, v4\nv_xor_b32 v5, s61, v5\nv_lshlrev_b32 v4, 8, v4")
    o("v_and_b32 v6, 3, v2\nv_lshlrev_b32 v6, 3, v6\nv_add_u32 v4, v4, v6\nv_add_u32 v4, 0x4000, v4\nv_lshlrev_b32 v5, 5, v5")
    o(f"v_add_u32 v{VWB}, v4, v5")
    for u in range(1, 4): o(f"v_xor_b32 v{VWB+u}, {32*u}, v{VWB}")
    o(f"v_mov_b32 v{VHR}, v{VHB}")
    for u in range(4): o(f"v_mov_b32 v{VWR+u}, v{VWB+u}")
    for i in range(64): o(f"v_mov_b32 v{ACC+i}, 0")
    o(f"s_mov_b32 s{sN}, 0\ns_mov_b32 s{sST}, 0")
    o("s_waitcnt vmcnt(0)")
    stamp(o, opt, 1)
    o("s_barrier")
    o(f"s_cmp_lg_u32 s{sW}, 0\ns_cbranch_scc1 L_p2_nocnt\nv_mov_b32 v3, 0\nv_mov_b32 v4, 1\ns_mov_b64 exec, 1")
    o(f"buffer_atomic_add v4, v3, s[{SDBG}:{SDBG+3}], 0 offen sc1\ns_mov_b64 exec, -1\nL_p2_nocnt:")
    for r in c_reads(0, 0): o(r)
    o(".p2align 6\nL_p2_cloop:")
    for half in range(2):
        M = c_mfmas(half); R = c_reads(half ^ 1, half ^ 1)
        gaps = [[] for _ in range(16)]
        for i in range(12): gaps[i].append(R[i])
        if half == 0:
            o("s_waitcnt lgkmcnt(6)")
            gaps[3].append("s_waitcnt lgkmcnt(7)")
            gaps[8].append("s_waitcnt lgkmcnt(9)")
            gaps[11].append(f"s_add_u32 s{sST}, s{sST}, 32768\ns_cmp_ge_u32 s{sST}, {NST*32768}\ns_cselect_b32 s{sST}, 0, s{sST}")
            gaps[12].append(f"v_add_u32 v{VHR}, s{sST}, v{VHB}\nv_add_u32 v{VWR}, s{sST}, v{VWB}")
            gaps[13].append(f"v_add_u32 v{VWR+1}, s{sST}, v{VWB+1}\nv_add_u32 v{VWR+2}, s{sST}, v{VWB+2}")
            gaps[14].append(f"v_add_u32 v{VWR+3}, s{sST}, v{VWB+3}")
        else:
            o("s_waitcnt lgkmcnt(0)\ns_barrier")
            gaps[15].append(f"s_add_u32 s{sN}, s{sN}, 1\ns_cmp_lt_u32 s{sN}, {NK}")
        for i in range(16):
            o(M[i])
            for g in gaps[i]: o(g)
    o("s_cbranch_scc1 L_p2_cloop")
    stamp(o, opt, 2)
    o(f"s_waitcnt lgkmcnt(0)\ns_nop 7\ns_lshr_b32 s60, s{sW}, 1\ns_and_b32 s61, s{sW}, 1\ns_lshl_b32 s61, s61, 14\nv_lshlrev_b32 v3, 4, v2")
    o(f"s_cmp_eq_u32 s60, s{sKH_}\ns_cbranch_scc1 L_p2_own")
    o(f"s_xor_b32 s62, s2, 1\ns_lshl_b32 s63, s62, 7\ns_add_u32 s63, s63, {hx(WS_FL)}\ns_lshl_b32 s62, s62, 15\ns_add_u32 s62, s62, s61\ns_add_u32 s62, s62, {hx(WS_XB)}")
    for i in range(16):
        o(f"buffer_store_dwordx4 {vr(ACC+4*i,4)}, v3, s[{SWS}:{SWS+3}], s62 offen offset:{(i&3)*1024} sc1")
        if (i & 3) == 3: o("s_add_u32 s62, s62, 4096")
    o("v_mov_b32 v3, 0\nv_mov_b32 v4, 1\ns_waitcnt vmcnt(0)\ns_barrier")
    o(f"s_cmp_lg_u32 s61, 0\ns_cbranch_scc1 L_p2_cend\ns_mov_b64 exec, 1\nbuffer_store_dword v4, v3, s[{SWS}:{SWS+3}], s63 offen sc1\ns_mov_b64 exec, -1\ns_branch L_p2_cend")
    o("L_p2_own:\nv_add_u32 v3, s61, v3")
    for i in range(16): o(f"ds_write_b128 v3, {vr(ACC+4*i,4)} offset:{i*1024}")
    o("s_waitcnt lgkmcnt(0)\ns_barrier")
    o("L_p2_cend:")
    stamp(o, opt, 3)
    stamp_out(o, opt, 1, sW, SWS, 5)
    o("L_p2_end:\ns_endpgm")
    return o.text(), kd(name, 256)
```

```python
from common import *
import math
NST = 5
NK = 28
SH, SWD, SWS, SOUT, SDBG = 24, 28, 32, 36, 40
sW, sPB, sET, sKH_, sN, sST, sK1, sK2, sLB = 48, 49, 50, 51, 52, 53, 54, 55, 56
ACC = 192
SETS = [128, 160]
VHR, VWR, VHB, VWB = 116, 117, 121, 122

def c_reads(st, kap):
    b = SETS[st]
    def w(u, rd): return f"ds_read_b64_tr_b16 {vr(b+16+4*u+2*rd,2)}, v{VWR+u} offset:{kap*8192+rd*4096}"
    def h(p): return f"ds_read_b128 {vr(b+4*p,4)}, v{VHR} offset:{p*2048+kap*1024}"
    return [w(0,0), w(0,1), h(0), w(1,0), w(1,1), h(1), w(2,0), w(2,1), h(2), w(3,0), w(3,1), h(3)]
def c_mfmas(st):
    b = SETS[st]; r = []
    for (p, u) in [(0,0),(0,1),(1,1),(1,0),(2,0),(2,1),(2,2),(1,2),(0,2),(0,3),(1,3),(2,3),(3,3),(3,2),(3,1),(3,0)]:
        A = vr(ACC + (p*4+u)*4, 4)
        r.append(f"v_mfma_f32_16x16x32_bf16 {A}, {vr(b+16+4*u,4)}, {vr(b+4*p,4)}, {A}")
    return r

def fft(o):
    ZA, ZB, C1, S1, N1 = 8, 24, 40, 48, 56
    U, TW, C3 = 64, 128, 192
    o(f"v_and_b32 v3, 31, v2\nv_lshrrev_b32 v4, 5, v2\nv_lshlrev_b32 v5, 6, v3\nv_lshlrev_b32 v6, 4, v4\nv_add_u32 v5, v5, v6")
    o(f"s_lshl_b32 s61, s60, 13\ns_add_u32 s61, s61, {hx(WS_Z)}\ns_add_u32 s62, s61, 4096")
    for part in range(2):
        for tile in range(2):
            for kap in range(2):
                o(f"buffer_load_dwordx4 {vr((ZA,ZB)[part]+(tile*2+kap)*4,4)}, v5, s[{SWS}:{SWS+3}], s{61+part} offen offset:{tile*2048+kap*32}")
    o("v_cvt_f32_u32 v210, v3\nv_cvt_f32_u32 v211, v4\nv_and_b32 v212, 1, v2\nv_mul_u32_u24 v212, 0x8000, v212\nv_mul_u32_u24 v212, 0x10001, v212")
    o("v_mul_f32 v211, v210, v211")
    def base(scale): o(f"v_mul_f32 v213, {hx(f2u(4.0*scale))}, v211")
    def cs(dc, ds, cst, scale, tmp):
        o(f"v_fmamk_f32 v{tmp}, v210, {hx(f2u(cst*scale))}, v213\nv_fract_f32 v{tmp}, v{tmp}")
        o(f"v_cos_f32 v{dc}, v{tmp}\nv_sin_f32 v{ds}, v{tmp}")
    def slot(j): return 8*(j >> 2) + (j & 3)
    base(1/32.)
    for j in range(8): cs(U+j, U+8+j, slot(j), 1/32., 214 + (j & 3))
    o("s_nop 0")
    for kap in range(2):
        for i in range(2):
            o(f"v_cvt_pk_bf16_f32 v{C1+4*kap+i}, v{U+4*kap+2*i}, v{U+4*kap+2*i+1}\nv_cvt_pk_bf16_f32 v{S1+4*kap+i}, v{U+8+4*kap+2*i}, v{U+8+4*kap+2*i+1}")
        for i in range(2):
            o(f"v_xor_b32 v{C1+4*kap+2+i}, v{C1+4*kap+i}, v212\nv_xor_b32 v{S1+4*kap+2+i}, v{S1+4*kap+i}, v212")
    for i in range(8): o(f"v_xor_b32 v{N1+i}, 0x80008000, v{S1+i}")
    base(1/64.)
    for kp in range(2):
        for j in range(8): cs(U+j, U+8+j, 16*kp + slot(j), 1/64., 214 + (j & 3))
        o("s_nop 0")
        for i in range(4):
            o(f"v_cvt_pk_bf16_f32 v{C3+4*kp+i}, v{U+2*i}, v{U+2*i+1}\nv_cvt_pk_bf16_f32 v{C3+8+4*kp+i}, v{U+8+2*i}, v{U+8+2*i+1}")
    base(1/2048.)
    for tile in range(2):
        for r in range(16):
            c = 32*tile + 8*(r >> 2) + (r & 3); t = 214 + (r & 3)
            o(f"v_fmamk_f32 v{t}, v210, {hx(f2u(c/2048.))}, v213\nv_cos_f32 v{TW+tile*16+r}, v{t}\nv_sin_f32 v{TW+32+tile*16+r}, v{t}")
    o("s_waitcnt vmcnt(0)")
    o("s_cmp_lg_u32 s60, 512\ns_cbranch_scc1 L_fft_nz")
    for i in range(16): o(f"v_mov_b32 v{ZB+i}, 0")
    o("L_fft_nz:\ns_nop 1")
    mf = "v_mfma_f32_32x32x16_bf16"
    for kap in range(2):
        for tile in range(2):
            za = vr(ZA+(tile*2+kap)*4, 4); zb = vr(ZB+(tile*2+kap)*4, 4)
            re = vr(U+tile*16, 16); im = vr(U+32+tile*16, 16)
            c0r = re if kap else "0"; c0i = im if kap else "0"
            o(f"{mf} {re}, {za}, {vr(C1+4*kap,4)}, {c0r}\n{mf} {im}, {zb}, {vr(C1+4*kap,4)}, {c0i}")
            o(f"{mf} {re}, {zb}, {vr(S1+4*kap,4)}, {re}\n{mf} {im}, {za}, {vr(N1+4*kap,4)}, {im}")
    C3X = 220
    for part in range(2):
        for kp in range(2):
            for i in range(4): o(f"v_xor_b32 v{C3X+8*part+4*kp+i}, v{C3+8*part+4*kp+i}, v212")
    def c3(part, kp): return (C3 if kp < 2 else C3X) + 8*part + 4*(kp & 1)
    for i in range(0, 32, 2):
        for d in range(2):
            k = i + d
            o(f"v_mul_f32 v{214+d}, v{U+k}, v{TW+k}\nv_mul_f32 v{216+d}, v{U+32+k}, v{TW+k}")
        for d in range(2):
            k = i + d
            o(f"v_fmac_f32 v{214+d}, v{U+32+k}, v{TW+32+k}\nv_fma_f32 v{216+d}, -v{U+k}, v{TW+32+k}, v{216+d}")
        o(f"v_cvt_pk_bf16_f32 v{8+i//2}, v214, v215\nv_cvt_pk_bf16_f32 v{24+i//2}, v216, v217")
    o("s_nop 1")
    first = True
    for kp in range(4):
        for part in range(2):
            Y = vr(U, 16)
            o(f"{mf} {Y}, {vr(c3(part,kp),4)}, {vr(8+16*part+4*kp,4)}, {'0' if first else Y}")
            first = False
            for i in range(4): o(f"v_xor_b32 v{TW+(kp*2+part)*4+i}, 0x80000000, v{c3(part,kp)+i}")
    o("s_nop 1")
    first = True
    for kp in range(4):
        for part in range(2):
            Y = vr(U+16, 16)
            o(f"{mf} {Y}, {vr(TW+(kp*2+part)*4,4)}, {vr(8+16*part+4*kp,4)}, {'0' if first else Y}")
            first = False
    o("v_lshlrev_b32 v5, 2, v3\nv_lshlrev_b32 v6, 9, v4\nv_add_u32 v5, v5, v6")
    o(f"s_lshl_b32 s61, s60, 13\ns_add_u32 s61, s61, {hx(WS_YT)}\ns_add_u32 s62, s61, 4096")
    for T in range(2):
        if T: o("s_nop 7")
        for r in range(16):
            o(f"buffer_store_dword v{U+16*T+r}, v5, s[{SWS}:{SWS+3}], s{61+T} offen offset:{(8*(r>>2)+(r&3))*128} sc1")

def gen_p2(opt):
    o = Asm()
    name = "p2_kernel"
    o(f".globl {name}\n.p2align 8\n.type {name},@function\n{name}:")
    o("s_cmp_ge_u32 s2, 256\ns_cbranch_scc1 L_p2_end")
    stamp(o, opt, 0)
    if opt.get("stamp"): o("s_mov_b64 s[84:85], 0\ns_mov_b64 s[86:87], 0\ns_mov_b64 s[88:89], 0\ns_mov_b64 s[90:91], 0\ns_mov_b64 s[92:93], 0\ns_mov_b64 s[94:95], 0")
    o("s_load_dwordx2 s[4:5], s[0:1], 64\ns_load_dwordx4 s[8:11], s[0:1], 80\ns_load_dwordx2 s[12:13], s[0:1], 96")
    o(f"v_lshrrev_b32 v1, 6, v0\nv_and_b32 v2, 63, v0\ns_nop 0\nv_readfirstlane_b32 s{sW}, v1")
    o(f"s_and_b32 s60, s2, 7\ns_lshr_b32 s61, s2, 3\ns_lshr_b32 s62, s60, 1\ns_lshl_b32 s62, s62, 2\ns_lshr_b32 s63, s61, 3\ns_add_u32 s{sPB}, s62, s63")
    o(f"s_and_b32 s{sET}, s61, 7\ns_and_b32 s{sKH_}, s60, 1")
    o(f"s_cmp_lt_u32 s{sW}, 4\ns_cbranch_scc1 L_p2_cons")
    VH, VWD = 10, 12
    o(f"s_sub_u32 s60, s{sW}, 4\ns_mul_i32 s61, s{sKH_}, {NK*262144}\ns_lshl_b32 s62, s{sPB}, 14\ns_add_u32 s61, s61, s62\ns_lshl_b32 s{sLB}, s60, 12\ns_add_u32 s61, s61, s{sLB}")
    o(f"v_lshlrev_b32 v3, 4, v2\nv_add_u32 v{VH}, s61, v3")
    o(f"v_lshrrev_b32 v4, 4, v2\nv_lshlrev_b32 v5, 11, v4\nv_lshlrev_b32 v4, 1, v4\nv_and_b32 v6, 15, v2\nv_xor_b32 v4, v4, v6\nv_lshlrev_b32 v4, 4, v4")
    o(f"s_mul_i32 s61, s{sKH_}, {1792*2048}\ns_lshl_b32 s62, s{sET}, 8\ns_add_u32 s61, s61, s62\ns_lshl_b32 s62, s60, 15\ns_add_u32 s61, s61, s62\nv_add_u32 v5, s61, v5")
    o(f"v_add_u32 v{VWD}, v5, v4\nv_xor_b32 v4, 0x80, v4\nv_add_u32 v{VWD+1}, v5, v4\nv_add_u32 v{VWD+1}, {8192-1024}, v{VWD+1}")
    o(f"v_add_u32 v{VWD+2}, {2*(8192-1024)}, v{VWD}\nv_add_u32 v{VWD+3}, {2*(8192-1024)}, v{VWD+1}")
    o(f"s_mov_b32 s{sK1}, 0\ns_mov_b32 s{sK2}, 0\ns_mov_b32 s{sST}, 0\ns_mov_b32 s{sN}, 0")
    o("s_waitcnt lgkmcnt(0)")
    srd(o, SWD, 4, 5, F*D*2)
    srd(o, SWS, 12, 13, WS_SIZE)
    def issue():
        o(f"s_add_u32 m0, s{sST}, s{sLB}\ns_nop 0")
        for j in range(4): o(f"buffer_load_dwordx4 v{VH}, s[{SWS}:{SWS+3}], s{sK1} offen offset:{j*1024} lds")
        o(f"s_add_u32 m0, m0, 16384\ns_nop 0")
        for j in range(4): o(f"buffer_load_dwordx4 v{VWD+j}, s[{SWD}:{SWD+3}], s{sK2} offen offset:{j*1024} lds")
        o(f"s_add_u32 s{sK1}, s{sK1}, 262144\ns_add_u32 s{sK2}, s{sK2}, 131072")
        o(f"s_add_u32 s{sST}, s{sST}, 32768\ns_cmp_ge_u32 s{sST}, {NST*32768}\ns_cselect_b32 s{sST}, 0, s{sST}")
    o("L_p2_lpro:"); issue()
    o(f"s_add_u32 s{sN}, s{sN}, 1\ns_cmp_lt_u32 s{sN}, {NST-1}\ns_cbranch_scc1 L_p2_lpro")
    srd(o, SOUT, 8, 9, S*D*2)
    srd(o, SDBG, 10, 11, 256)
    o(f"s_mov_b32 s{sN}, 0\nL_p2_lloop:\ns_waitcnt vmcnt({8*(NST-2)})\ns_barrier")
    issue()
    o(f"s_add_u32 s{sN}, s{sN}, 1\ns_cmp_lt_u32 s{sN}, {NK-(NST-1)}\ns_cbranch_scc1 L_p2_lloop")
    o(f"v_mov_b32 v9, 0\nbuffer_load_dword v10, v9, s[{SDBG}:{SDBG+3}], 0 offen sc1")
    o(f"s_lshl_b32 s63, s{sPB}, 7\ns_lshl_b32 s64, s60, 5\ns_add_u32 s63, s63, s64\nv_and_b32 v4, 15, v2\nv_add_u32 v4, s63, v4\nv_lshrrev_b32 v5, 4, v2")
    o(f"s_lshl_b32 s64, s{sET}, 7\ns_lshl_b32 s65, s{sKH_}, 6\ns_add_u32 s64, s64, s65")
    o("v_lshlrev_b32 v6, 2, v4\nv_lshlrev_b32 v7, 15, v5\ns_cmp_ge_u32 s64, 512\ns_cbranch_scc1 L_p2_mir")
    o(f"v_add_u32 v12, v6, v7\nv_add_u32 v13, 64, v12\ns_lshl_b32 s66, s64, 13\ns_mov_b32 s67, 8192\ns_branch L_p2_mird\nL_p2_mir:")
    o(f"v_sub_u32 v12, 0x800, v4\nv_subrev_u32 v13, 16, v12\nv_and_b32 v12, 0x7ff, v12\nv_lshlrev_b32 v12, 2, v12\nv_lshlrev_b32 v13, 2, v13\nv_sub_u32 v7, 0x18000, v7\nv_add_u32 v12, v12, v7\nv_add_u32 v13, v13, v7")
    o(f"s_sub_u32 s66, 1012, s64\ns_lshl_b32 s66, s66, 13\ns_mov_b32 s67, -8192\nL_p2_mird:\ns_add_u32 s66, s66, {hx(WS_YT)}")
    for m in range(NK-(NST-1), NK):
        o(f"s_waitcnt vmcnt({8*(NK-1-m)+1})\ns_barrier")
    o(f"L_p2_poll1:\ns_waitcnt vmcnt(0)\nv_readfirstlane_b32 s68, v10\ns_nop 3\ns_cmp_ge_u32 s68, 256\ns_cbranch_scc1 L_p2_poll1d\ns_sleep 1\nbuffer_load_dword v10, v9, s[{SDBG}:{SDBG+3}], 0 offen sc1\ns_branch L_p2_poll1\nL_p2_poll1d:")
    o(f"s_mov_b32 s68, {hx(WS_G)}\nbuffer_load_dword v14, v6, s[{SWS}:{SWS+3}], s68 offen\nbuffer_load_dword v15, v6, s[{SWS}:{SWS+3}], s68 offen offset:64")
    Y0 = 32
    for u in range(4):
        for r in range(4):
            o(f"s_mul_i32 s68, s67, {16*u+r}\ns_add_u32 s68, s68, s66")
            for a in range(2): o(f"buffer_load_dword v{Y0+(a*4+u)*4+r}, v{12+a}, s[{SWS}:{SWS+3}], s68 offen sc1")
    o("s_barrier")
    o("v_lshlrev_b32 v6, 11, v4\nv_and_b32 v7, 16, v2\nv_lshlrev_b32 v7, 1, v7\nv_add_u32 v6, v6, v7\nv_lshrrev_b32 v7, 5, v2\nv_lshlrev_b32 v7, 4, v7\nv_add_u32 v6, v6, v7\ns_lshl_b32 s64, s64, 1\ns_add_u32 s65, s64, 32768")
    o(f"s_lshl_b32 s62, s60, 13\nv_lshlrev_b32 v3, 4, v2\nv_add_u32 v3, s62, v3\nv_add_u32 v8, 4096, v3")
    o("s_waitcnt vmcnt(0)")
    for a in range(2):
        o(f"v_sub_f32 v{16+a}, 1.0, v{14+a}\nv_cvt_pk_bf16_f32 v{16+a}, v{16+a}, v{16+a}\nv_lshlrev_b32 v{16+a}, 16, v{16+a}")
        for i in range(16): o(f"v_mul_f32 v{Y0+16*a+i}, v{14+a}, v{Y0+16*a+i}")
    o(f"s_lshl_b32 s66, s2, 7\ns_add_u32 s66, s66, {hx(WS_FL)}")
    o("s_barrier")
    stamp(o, opt, 3)
    O0, X0 = 64, 96
    for i in range(8): o(f"ds_read_b128 {vr(O0+4*i,4)}, v3 offset:{i*1024}")
    o(f"L_p2_poll2:\nbuffer_load_dword v10, v9, s[{SWS}:{SWS+3}], s66 offen sc1\ns_waitcnt vmcnt(0)\nv_readfirstlane_b32 s67, v10\ns_nop 3\ns_cmp_eq_u32 s67, 1\ns_cbranch_scc1 L_p2_poll2d\ns_sleep 1\ns_branch L_p2_poll2\nL_p2_poll2d:")
    o(f"s_lshl_b32 s66, s2, 15\ns_add_u32 s66, s66, {hx(WS_XB)}")
    for i in range(8): o(f"buffer_load_dwordx4 {vr(X0+4*i,4)}, v{3 if i < 4 else 8}, s[{SWS}:{SWS+3}], s66 offen offset:{(i&3)*1024} sc1")
    o("s_waitcnt lgkmcnt(0)")
    for i in range(32): o(f"v_fmac_f32 v{Y0+i}, v{16+i//16}, v{O0+i}")
    for a in range(2):
        o(f"s_waitcnt vmcnt({4-4*a + 2*a})" if a == 0 else "s_waitcnt vmcnt(2)")
        for i in range(16): o(f"v_fmac_f32 v{Y0+16*a+i}, v{16+a}, v{X0+16*a+i}")
        P = 128 + 8*a
        for u in range(4):
            d = P + 4*(u >> 1) + 2*(u & 1)
            o(f"v_cvt_pk_bf16_f32 v{d}, v{Y0+16*a+4*u}, v{Y0+16*a+4*u+1}\nv_cvt_pk_bf16_f32 v{d+1}, v{Y0+16*a+4*u+2}, v{Y0+16*a+4*u+3}")
        o(f"s_nop 1\nv_permlane16_swap_b32 v{P}, v{P+2}\nv_permlane16_swap_b32 v{P+1}, v{P+3}\nv_permlane16_swap_b32 v{P+4}, v{P+6}\nv_permlane16_swap_b32 v{P+5}, v{P+7}")
        o(f"buffer_store_dwordx4 {vr(P,4)}, v6, s[{SOUT}:{SOUT+3}], s{64+a} offen\nbuffer_store_dwordx4 {vr(P+4,4)}, v6, s[{SOUT}:{SOUT+3}], s{64+a} offen offset:64")
    stamp_out(o, opt, 1, sW, SWS, 5)
    if opt.get("dbgout"):
        o(f"s_lshl_b32 s60, s2, 3\ns_add_u32 s60, s60, s{sW}\ns_cmp_lg_u32 s60, {opt['dbgout']*8+4}\ns_cbranch_scc1 L_p2_end")
        o(f"v_lshlrev_b32 v3, 2, v2\ns_mov_b32 s61, {hx(WS_ST + (opt['dbgout']*8+4)*64)}\ns_mov_b64 exec, 0xff\nbuffer_load_dword v4, v3, s[{SWS}:{SWS+3}], s61 offen sc1\ns_waitcnt vmcnt(0)\nbuffer_store_dword v4, v3, s[{SDBG}:{SDBG+3}], 0 offen offset:4")
        o(f"s_mov_b64 exec, 1\nv_mov_b32 v4, s80\nv_mov_b32 v5, s82\nv_mov_b32 v6, s96\nv_mov_b32 v7, s98\nbuffer_store_dwordx4 v[4:7], v3, s[{SDBG}:{SDBG+3}], 0 offen offset:48")
        o(f"v_mov_b32 v4, s92\nv_mov_b32 v5, s94\nbuffer_store_dwordx2 v[4:5], v3, s[{SDBG}:{SDBG+3}], 0 offen offset:40")
    o("s_endpgm")
    o("L_p2_cons:\ns_waitcnt lgkmcnt(0)")
    srd(o, SWS, 12, 13, WS_SIZE)
    srd(o, SDBG, 10, 11, 256)
    o(f"s_lshl_b32 s60, s2, 1\ns_add_u32 s60, s60, s{sW}\ns_cmp_lt_u32 s{sW}, 2\ns_cbranch_scc1 L_p2_fft")
    o(f"s_mov_b32 s60, 512\ns_lshl_b32 s61, s2, 2\ns_add_u32 s61, s61, s{sW}\ns_cmp_lg_u32 s61, 2\ns_cbranch_scc1 L_p2_nofft")
    o("L_p2_fft:")
    fft(o)
    o("L_p2_nofft:")
    o(f"s_and_b32 s60, s{sW}, 1\ns_lshl_b32 s60, s60, 13\nv_lshlrev_b32 v3, 4, v2\nv_add_u32 v{VHB}, s60, v3")
    o(f"s_lshr_b32 s61, s{sW}, 1\ns_lshl_b32 s61, s61, 2\nv_lshrrev_b32 v4, 2, v2\nv_and_b32 v5, 7, v4\nv_xor_b32 v5, s61, v5\nv_lshlrev_b32 v4, 8, v4")
    o("v_and_b32 v6, 3, v2\nv_lshlrev_b32 v6, 3, v6\nv_add_u32 v4, v4, v6\nv_add_u32 v4, 0x4000, v4\nv_lshlrev_b32 v5, 5, v5")
    o(f"v_add_u32 v{VWB}, v4, v5")
    for u in range(1, 4): o(f"v_xor_b32 v{VWB+u}, {32*u}, v{VWB}")
    o(f"v_mov_b32 v{VHR}, v{VHB}")
    for u in range(4): o(f"v_mov_b32 v{VWR+u}, v{VWB+u}")
    for i in range(64): o(f"v_mov_b32 v{ACC+i}, 0")
    o(f"s_mov_b32 s{sN}, 0\ns_mov_b32 s{sST}, 0")
    o("s_waitcnt vmcnt(0)")
    stamp(o, opt, 1)
    o("s_barrier")
    o(f"s_cmp_lg_u32 s{sW}, 0\ns_cbranch_scc1 L_p2_nocnt\nv_mov_b32 v3, 0\nv_mov_b32 v4, 1\ns_mov_b64 exec, 1")
    o(f"buffer_atomic_add v4, v3, s[{SDBG}:{SDBG+3}], 0 offen sc1\ns_mov_b64 exec, -1\nL_p2_nocnt:")
    for r in c_reads(0, 0): o(r)
    o(".p2align 6\nL_p2_cloop:")
    for half in range(2):
        M = c_mfmas(half); R = c_reads(half ^ 1, half ^ 1)
        gaps = [[] for _ in range(16)]
        for i in range(12): gaps[i].append(R[i])
        if half == 0:
            o("s_waitcnt lgkmcnt(6)")
            gaps[3].append("s_waitcnt lgkmcnt(7)")
            gaps[8].append("s_waitcnt lgkmcnt(9)")
            gaps[11].append(f"s_add_u32 s{sST}, s{sST}, 32768\ns_cmp_ge_u32 s{sST}, {NST*32768}\ns_cselect_b32 s{sST}, 0, s{sST}")
            gaps[12].append(f"v_add_u32 v{VHR}, s{sST}, v{VHB}\nv_add_u32 v{VWR}, s{sST}, v{VWB}")
            gaps[13].append(f"v_add_u32 v{VWR+1}, s{sST}, v{VWB+1}\nv_add_u32 v{VWR+2}, s{sST}, v{VWB+2}")
            gaps[14].append(f"v_add_u32 v{VWR+3}, s{sST}, v{VWB+3}")
        else:
            o("s_waitcnt lgkmcnt(0)\ns_barrier")
            gaps[15].append(f"s_add_u32 s{sN}, s{sN}, 1\ns_cmp_lt_u32 s{sN}, {NK}")
        for i in range(16):
            o(M[i])
            for g in gaps[i]: o(g)
    o("s_cbranch_scc1 L_p2_cloop")
    stamp(o, opt, 2)
    o(f"s_waitcnt lgkmcnt(0)\ns_nop 7\ns_lshr_b32 s60, s{sW}, 1\ns_and_b32 s61, s{sW}, 1\ns_lshl_b32 s61, s61, 14\nv_lshlrev_b32 v3, 4, v2")
    o(f"s_cmp_eq_u32 s60, s{sKH_}\ns_cbranch_scc1 L_p2_own")
    o(f"s_xor_b32 s62, s2, 1\ns_lshl_b32 s63, s62, 7\ns_add_u32 s63, s63, {hx(WS_FL)}\ns_lshl_b32 s62, s62, 15\ns_add_u32 s62, s62, s61\ns_add_u32 s62, s62, {hx(WS_XB)}")
    for i in range(16):
        o(f"buffer_store_dwordx4 {vr(ACC+4*i,4)}, v3, s[{SWS}:{SWS+3}], s62 offen offset:{(i&3)*1024} sc1")
        if (i & 3) == 3: o("s_add_u32 s62, s62, 4096")
    o("v_mov_b32 v3, 0\nv_mov_b32 v4, 1\ns_waitcnt vmcnt(0)\ns_barrier")
    o(f"s_cmp_lg_u32 s61, 0\ns_cbranch_scc1 L_p2_cend\ns_mov_b64 exec, 1\nbuffer_store_dword v4, v3, s[{SWS}:{SWS+3}], s63 offen sc1\ns_mov_b64 exec, -1\ns_branch L_p2_cend")
    o("L_p2_own:\nv_add_u32 v3, s61, v3")
    for i in range(16): o(f"ds_write_b128 v3, {vr(ACC+4*i,4)} offset:{i*1024}")
    o("s_waitcnt lgkmcnt(0)\ns_barrier")
    o("L_p2_cend:")
    stamp(o, opt, 3)
    stamp_out(o, opt, 1, sW, SWS, 5)
    o("L_p2_end:\ns_endpgm")
    return o.text(), kd(name, 256)
```

```python
import struct
S, D, F = 2048, 1024, 3584
import os
H_PS = int(os.environ.get("H_PS", 16384))
H_SS = int(os.environ.get("H_SS", 262144))
XB_S = int(os.environ.get("XB_S", 32768))
WS_H   = 0x0000000
WS_Z   = 0x1400000
WS_G   = 0x1900000
WS_TAG = 0x1910000
WS_YT  = 0x1A00000
WS_XB  = 0x1F00000
WS_ST  = 0x2A00000
WS_SIZE = 0x2B00000
def f2u(x): return struct.unpack("<I", struct.pack("<f", x))[0]
def hx(x): return "0x%08x" % (x & 0xffffffff)
class Asm:
    def __init__(self): self.L = []
    def __call__(self, s):
        for l in s.split("\n"):
            l = l.strip()
            if l: self.L.append(("" if l.endswith(":") else "    ") + l)
    def text(self): return "\n".join(self.L) + "\n"
def vr(a, n=1): return f"v{a}" if n == 1 else f"v[{a}:{a+n-1}]"
def sr(a, n=1): return f"s{a}" if n == 1 else f"s[{a}:{a+n-1}]"
def kd(name, vgpr, sgpr=102, accum=None):
    accum = accum or ((vgpr + 3) // 4 * 4)
    return f""".p2align 6
.amdhsa_kernel {name}
  .amdhsa_next_free_vgpr {vgpr}
  .amdhsa_next_free_sgpr {sgpr}
  .amdhsa_accum_offset {accum}
  .amdhsa_group_segment_fixed_size 0
  .amdhsa_kernarg_size 104
  .amdhsa_user_sgpr_count 2
  .amdhsa_user_sgpr_kernarg_segment_ptr 1
  .amdhsa_system_sgpr_workgroup_id_x 1
.end_amdhsa_kernel
"""
def srd(o, d, lo, hi, nbytes):
    o(f"s_mov_b32 s{d}, s{lo}\ns_and_b32 s{d+1}, s{hi}, 0xffff\ns_mov_b32 s{d+2}, {hx(nbytes)}\ns_mov_b32 s{d+3}, 0x20000")

def stamp(o, opt, i):
    if opt.get("stamp"):
        o(f"s_memrealtime s[{80+4*i}:{81+4*i}]\ns_memtime s[{82+4*i}:{83+4*i}]\ns_waitcnt lgkmcnt(0)")
def stamp_out(o, opt, kidx, sW, srdn, n):
    if opt.get("stamp"):
        o(f"s_waitcnt vmcnt(0)\ns_memrealtime s[{80+4*(n-1)}:{81+4*(n-1)}]\ns_memtime s[{82+4*(n-1)}:{83+4*(n-1)}]\ns_waitcnt lgkmcnt(0)")
        o(f"s_lshl_b32 s60, s2, 3\ns_add_u32 s60, s60, s{sW}\ns_lshl_b32 s60, s60, 6\ns_add_u32 s60, s60, {hx(WS_ST + kidx*131072)}\nv_mov_b32 v1, 0\ns_mov_b64 exec, 1")
        for i in range(n):
            o(f"v_mov_b32 v4, s{80+4*i}\nv_mov_b32 v5, s{82+4*i}\nbuffer_store_dwordx2 v[4:5], v1, s[{srdn}:{srdn+3}], s60 offen offset:{8*i}\ns_nop 1")
        o("s_mov_b64 exec, -1")

def hx64(x): return "-1" if x == (1 << 64) - 1 else hex(x)

def setexec(n): return "s_mov_b64 exec, -1" if n == 64 else f"s_bfm_b64 exec, {n}, 0"
```

```python
from common import *
import math

ACC = 128
def acc(mt, nt): return ACC + (mt * 4 + nt) * 4
SETS = [dict(X=16, W=48), dict(X=64, W=96)]
VAR = 112
VBR = 114
VBR0 = 116
VAD = 118
VBD = 122
VPF = 124
SA, SB0, SB1, SWS, SM1, SM2 = 24, 28, 32, 36, 40, 44
SPF, sPFX, sPFO, sPFS = 96, 94, 92, 93
sW, sMB_, sNB, sDFT, sSTR, sKA, sKB, sSTEP, sMA, sC, sN, sWB = 48, 49, 50, 51, 52, 53, 54, 55, 56, 57, 58, 59

def reads(st, ks):
    s = SETS[st]
    def w(nt, rd): return f"ds_read_b64_tr_b16 {vr(s['W']+nt*4+rd*2,2)}, v{VBR+(nt&1)} offset:{ks*16384+(nt>>1)*2048+rd*1024}"
    def x(mt): return f"ds_read_b128 {vr(s['X']+mt*4,4)}, v{VAR+ks} offset:{mt*2048}"
    return [w(0,0), w(0,1), x(0), w(1,0), w(1,1), x(1), w(2,0), w(2,1), x(2), w(3,0), w(3,1), x(3), x(4), x(5), x(6), x(7)]

def order(opt):
    k = opt.get("order", "msnake")
    if k == "msnake": return [(m, n if m % 2 == 0 else 3 - n) for m in range(8) for n in range(4)]
    if k == "nsnake": return [(m if n % 2 == 0 else 7 - m, n) for n in range(4) for m in range(8)]
    if k == "mfirst": return [(m, n) for m in range(8) for n in range(4)]

def mfmas(st, dft, opt):
    s = SETS[st]; r = []
    for (mt, nt) in order(opt):
        W = vr(s['W']+nt*4,4); X = vr(s['X']+mt*4,4); A = vr(acc(mt,nt),4)
        a, b = (X, W) if dft else (W, X)
        r.append(f"v_mfma_f32_16x16x32_bf16 {A}, {a}, {b}, {A}")
    return r

def dmaA(j): return f"buffer_load_dwordx4 v{VAD+j}, s[{SA}:{SA+3}], s{sKA} offen offset:{j*1024} lds"
def dmaB(j):
    srdn = SB0 if j < 2 else SB1
    return f"buffer_load_dwordx4 v{VBD+(j&1)}, s[{srdn}:{srdn+3}], s{sKB} offen offset:{j*1024} lds"

def mainloop(o, dft, tag, opt):
    o(f".p2align 6\nL_loop_{tag}:")
    for ks in range(2):
        M = mfmas(ks, dft, opt)
        R = reads(ks ^ 1, ks ^ 1)
        gaps = [[] for _ in range(32)]
        for i in range(16): gaps[i].append(R[i])
        PF = opt.get("pf1", 0)
        if ks == 0:
            pre = "s_waitcnt lgkmcnt(0)"
            b0 = opt.get("bpos", 4)
            gaps[b0-1].append(f"s_add_u32 m0, s{sC}, s{sWB}")
            for j in range(4): gaps[b0+4*j].append(dmaB(j))
            if PF: gaps[30].append(f"s_mov_b64 exec, s[{sPFX}:{sPFX+1}]\nbuffer_load_dword v{VPF+1}, v{VPF}, s[{SPF}:{SPF+3}], s{sPFO} offen\ns_mov_b64 exec, -1\ns_add_u32 s{sPFO}, s{sPFO}, s{sPFS}")
            gaps[17].append(f"s_add_u32 s60, s{sC}, 32768\ns_cmp_ge_u32 s60, 98304\ns_cselect_b32 s{sC}, 0, s60")
            gaps[18].append(f"s_add_u32 s60, s{sC}, 32768\ns_cmp_ge_u32 s60, 98304\ns_cselect_b32 s61, 0, s60")
            gaps[21].append(f"v_xor_b32 v{VAR}, 0x8000, v{VAR}"); gaps[22].append(f"v_xor_b32 v{VAR+1}, 0x8000, v{VAR+1}")
            gaps[25].append(f"v_add_u32 v{VBR}, s61, v{VBR0}"); gaps[26].append(f"v_add_u32 v{VBR+1}, s61, v{VBR0+1}")
            gaps[29].append(f"s_add_u32 s{sKB}, s{sKB}, s{sSTEP}\ns_add_u32 s{sKA}, s{sKA}, 128")
        else:
            pre = f"s_cmp_ge_u32 s{sN}, 14\ns_cselect_b32 s{SA+2}, 0, s{SA+2}\ns_mov_b32 m0, s{sMA}\ns_waitcnt vmcnt({5 if PF else 4}) lgkmcnt(0)\ns_barrier"
            a0 = opt.get("apos", 0); ast = opt.get("astep", 2)
            for j in range(4): gaps[a0+ast*j].append(dmaA(j))
            gaps[17].append(f"s_cmp_ge_u32 s{sN}, 13\ns_cselect_b32 s{SB0+2}, 0, s{SB0+2}\ns_cselect_b32 s{SB1+2}, 0, s{SB1+2}")
            gaps[31].append(f"s_xor_b32 s{sMA}, s{sMA}, 0x8000\ns_add_u32 s{sN}, s{sN}, 1\ns_cmp_lt_u32 s{sN}, 16")
        o(pre)
        for i in range(32):
            o(M[i])
            for g in gaps[i]: o(g)
    o(f"s_cbranch_scc1 L_loop_{tag}\ns_waitcnt lgkmcnt(0)")

def prefetch_wd(o, opt):
    mode = opt.get("pfwd", 1)
    if not mode: return
    srd(o, SM1, 20, 21, F*D*2)
    if mode == 1:
        o(f"s_mul_i32 s60, s2, 28672\ns_mul_i32 s61, s{sW}, 3584\ns_add_u32 s60, s60, s61\nv_lshlrev_b32 v{VPF}, 7, v2")
        o(f"s_mov_b64 exec, 0xfffffff\nbuffer_load_dword v{VPF+1}, v{VPF}, s[{SM1}:{SM1+3}], s60 offen\ns_mov_b64 exec, -1")
        if opt.get("hot", 1):
            o(f"s_and_b32 s60, s2, 1\ns_mul_i32 s60, s60, {1792*2048}\ns_lshr_b32 s61, s2, 3\ns_lshl_b32 s61, s61, 3\ns_add_u32 s61, s61, s{sW}\ns_mul_i32 s61, s61, {7*2048}\ns_add_u32 s60, s60, s61\ns_add_u32 s60, s60, 384")
            o(f"v_lshlrev_b32 v{VPF}, 10, v2\ns_mov_b64 exec, 0x3fff\nbuffer_load_dword v{VPF+1}, v{VPF}, s[{SM1}:{SM1+3}], s60 offen\ns_mov_b64 exec, -1")
        return
    NL = opt.get("wdl2", 56)
    NM = (112 - NL) // 4
    o(f"s_and_b32 s60, s2, 1\ns_mul_i32 s60, s60, {1792*2048}\ns_lshr_b32 s61, s2, 3\ns_lshl_b32 s61, s61, 3\ns_add_u32 s61, s61, s{sW}\nv_lshlrev_b32 v{VPF}, 7, v2")
    done = 0
    while done < NL:
        n = min(64, NL - done)
        o(f"s_mul_i32 s62, s61, {NL*128}\ns_add_u32 s62, s62, s60\ns_add_u32 s62, s62, {done*128}\n{setexec(n)}\nbuffer_load_dword v{VPF+1}, v{VPF}, s[{SM1}:{SM1+3}], s62 offen")
        done += n
    if NM:
        o(f"s_lshr_b32 s62, s2, 1\ns_and_b32 s62, s62, 3\ns_lshl_b32 s62, s62, 8\ns_add_u32 s62, s62, s61\ns_mul_i32 s62, s62, {NM*128}\ns_add_u32 s62, s62, s60\ns_add_u32 s62, s62, {NL*128*256}")
        o(f"{setexec(NM)}\nbuffer_load_dword v{VPF+1}, v{VPF}, s[{SM1}:{SM1+3}], s62 offen")
    o("s_mov_b64 exec, -1")

def gen_p1(opt):
    o = Asm()
    name = "p1_kernel"
    o(f".globl {name}\n.p2align 8\n.type {name},@function\n{name}:")
    o("s_cmp_ge_u32 s2, 256\ns_cbranch_scc1 L_p1_end")
    stamp(o, opt, 0)
    o("s_load_dwordx2 s[4:5], s[0:1], 0\ns_load_dwordx4 s[8:11], s[0:1], 24\ns_load_dwordx4 s[12:15], s[0:1], 48")
    o("s_load_dwordx4 s[20:23], s[0:1], 64\ns_load_dwordx2 s[18:19], s[0:1], 96")
    o(f"v_lshrrev_b32 v1, 6, v0\nv_and_b32 v2, 63, v0\ns_nop 0\nv_readfirstlane_b32 s{sW}, v1")
    o("s_and_b32 s60, s2, 7\ns_lshr_b32 s61, s2, 3")
    if opt.get("map1", "m2") == "m8":
        o(f"s_and_b32 s{sMB_}, s61, 7\ns_lshr_b32 s62, s61, 3\ns_lshl_b32 s{sNB}, s60, 2\ns_add_u32 s{sNB}, s{sNB}, s62")
    elif opt.get("map1", "m2") == "m4":
        o(f"s_and_b32 s62, s60, 1\ns_lshl_b32 s62, s62, 2\ns_and_b32 s63, s61, 3\ns_add_u32 s{sMB_}, s62, s63")
        o(f"s_lshr_b32 s62, s60, 1\ns_lshr_b32 s63, s61, 2\ns_mul_i32 s{sNB}, s62, 7\ns_add_u32 s{sNB}, s{sNB}, s63\ns_add_u32 s64, s62, 28\ns_cmp_eq_u32 s63, 7\ns_cselect_b32 s{sNB}, s64, s{sNB}")
    else:
        o(f"s_lshr_b32 s62, s60, 1\ns_lshl_b32 s62, s62, 1\ns_and_b32 s63, s61, 1\ns_add_u32 s{sMB_}, s62, s63")
        o(f"s_and_b32 s62, s60, 1\ns_lshr_b32 s63, s61, 1\ns_mul_i32 s{sNB}, s62, 14\ns_add_u32 s{sNB}, s{sNB}, s63\ns_lshl_b32 s64, s62, 1\ns_add_u32 s64, s64, s63\ns_add_u32 s64, s64, 14\ns_cmp_ge_u32 s63, 14\ns_cselect_b32 s{sNB}, s64, s{sNB}")
    o(f"s_cmp_ge_u32 s{sNB}, 28\ns_cselect_b32 s{sDFT}, 1, 0\ns_cbranch_scc1 L_p1_dft0")
    o(f"s_mov_b32 s{sSTR}, 7168\ns_lshl_b32 s65, s{sNB}, 8")
    o(f"s_lshl_b32 s66, s{sMB_}, 8\ns_lshl_b32 s67, s{sW}, 5\ns_add_u32 s66, s66, s67\ns_lshl_b32 s66, s66, 11")
    o("s_mov_b32 s67, 11\ns_mov_b32 s68, %d\ns_mov_b32 s69, %d" % (16384 - 1024, D*F*2))
    o("s_branch L_p1_setup2\nL_p1_dft0:")
    o(f"s_mov_b32 s{sSTR}, 2048\ns_sub_u32 s{sNB}, s{sNB}, 28\ns_lshl_b32 s65, s{sNB}, 8")
    o(f"s_lshl_b32 s66, s{sMB_}, 3\ns_add_u32 s66, s66, s{sW}\ns_lshl_b32 s66, s66, 11")
    o("s_mov_b32 s67, 17\ns_mov_b32 s68, %d\ns_mov_b32 s69, %d" % (1048576 - 1024, D*D*2))
    o("L_p1_setup2:")
    o("v_lshrrev_b32 v4, 3, v2\nv_lshlrev_b32 v4, s67, v4\nv_add_u32 v4, s66, v4")
    o("v_and_b32 v5, 7, v2\nv_lshrrev_b32 v6, 4, v2\nv_xor_b32 v5, v5, v6")
    o("v_xor_b32 v7, 4, v5\nv_lshlrev_b32 v5, 4, v5\nv_lshlrev_b32 v7, 4, v7")
    o(f"v_add_u32 v{VAD}, v4, v5\nv_add_u32 v4, s68, v4\nv_add_u32 v{VAD+1}, v4, v7\nv_add_u32 v4, s68, v4\nv_add_u32 v{VAD+2}, v4, v5\nv_add_u32 v4, s68, v4\nv_add_u32 v{VAD+3}, v4, v7")
    o(f"s_lshl_b32 s66, s{sW}, 3\nv_add_u32 v5, s66, v6\nv_mul_lo_u32 v5, v5, s{sSTR}\ns_and_b32 s66, s{sW}, 1\ns_lshl_b32 s66, s66, 1")
    o("v_lshlrev_b32 v4, 2, v6\nv_and_b32 v6, 15, v2\nv_xor_b32 v4, v4, v6\nv_xor_b32 v4, s66, v4\nv_lshlrev_b32 v4, 4, v4\nv_add_u32 v5, v5, v4")
    o(f"v_add_u32 v{VBD}, s65, v5\ns_lshl_b32 s66, s{sSTR}, 2\ns_sub_u32 s66, s66, 1024\nv_add_u32 v{VBD+1}, s66, v{VBD}")
    o(f"s_lshl_b32 s{sSTEP}, s{sSTR}, 6\ns_lshl_b32 s66, s{sW}, 12\ns_add_u32 s{sWB}, s66, 65536")
    o(f"s_mov_b32 s{sKA}, 0\ns_mov_b32 s{sKB}, 0\ns_mov_b32 m0, s66")
    o("s_waitcnt lgkmcnt(0)")
    srd(o, SA, 4, 5, S*D*2)
    for j in range(4): o(dmaA(j))
    o(f"s_cmp_eq_u32 s{sDFT}, 1\ns_cselect_b32 s{SB0}, s8, s12\ns_cselect_b32 s{SB0+1}, s9, s13\ns_cselect_b32 s{SB1}, s10, s14\ns_cselect_b32 s{SB1+1}, s11, s15")
    o(f"s_and_b32 s{SB0+1}, s{SB0+1}, 0xffff\ns_and_b32 s{SB1+1}, s{SB1+1}, 0xffff\ns_sub_u32 s{SB1}, s{SB1}, 2048\ns_subb_u32 s{SB1+1}, s{SB1+1}, 0")
    o(f"s_mov_b32 s{SB0+2}, s69\ns_add_u32 s{SB1+2}, s69, 2048\ns_mov_b32 s{SB0+3}, 0x20000\ns_mov_b32 s{SB1+3}, 0x20000\ns_mov_b32 m0, s{sWB}\ns_nop 0")
    for j in range(4): o(dmaB(j))
    srd(o, SWS, 18, 19, WS_SIZE)
    srd(o, SM1, 22, 23, D*2)
    srd(o, SM2, 8, 9, D*D*2)
    o(f"s_lshl_b32 s70, s2, 3\ns_add_u32 s70, s70, s{sW}\ns_lshl_b32 s63, s70, 11\nv_lshlrev_b32 v3, 4, v2\ns_mov_b32 s64, {512*2048}")
    o(f"buffer_load_dwordx4 v[64:67], v3, s[{SA}:{SA+3}], s63 offen\nbuffer_load_dwordx4 v[68:71], v3, s[{SA}:{SA+3}], s63 offen offset:1024")
    o(f"buffer_load_dwordx4 v[72:75], v3, s[{SM1}:{SM1+3}], 0 offen\nbuffer_load_dwordx4 v[76:79], v3, s[{SM1}:{SM1+3}], 0 offen offset:1024")
    o(f"buffer_load_dwordx4 v[80:83], v3, s[{SM2}:{SM2+3}], s64 offen\nbuffer_load_dwordx4 v[84:87], v3, s[{SM2}:{SM2+3}], s64 offen offset:1024")
    o(f"s_add_u32 m0, s66, 32768\ns_mov_b32 s{sKA}, 128\ns_mov_b32 s{sKB}, s{sSTEP}")
    for j in range(4): o(dmaA(j))
    o(f"s_add_u32 m0, s{sWB}, 32768\ns_nop 0")
    for j in range(4): o(dmaB(j))
    o(f"s_add_u32 s{sKB}, s{sKB}, s{sSTEP}\ns_mov_b32 s{sMA}, s66\ns_mov_b32 s{sC}, 65536\ns_mov_b32 s{sN}, 0")
    o(f"s_lshr_b32 s66, s{sW}, 2\ns_lshl_b32 s66, s66, 14\nv_and_b32 v4, 15, v2\nv_lshlrev_b32 v5, 7, v4\nv_add_u32 v5, s66, v5")
    o("v_lshrrev_b32 v6, 1, v4\nv_lshrrev_b32 v7, 4, v2\nv_xor_b32 v6, v6, v7")
    o(f"v_lshlrev_b32 v6, 4, v6\nv_add_u32 v{VAR}, v5, v6\nv_xor_b32 v{VAR+1}, 64, v{VAR}")
    o(f"s_and_b32 s66, s{sW}, 3\nv_lshrrev_b32 v4, 2, v2\nv_and_b32 v4, 3, v4\nv_xor_b32 v5, s66, v4\nv_lshlrev_b32 v5, 6, v5\nv_lshlrev_b32 v4, 8, v4\nv_add_u32 v4, v4, v5")
    o("v_lshlrev_b32 v5, 12, v7\nv_add_u32 v4, v4, v5\nv_and_b32 v5, 16, v2\nv_lshlrev_b32 v5, 1, v5\nv_add_u32 v4, v4, v5")
    o(f"v_and_b32 v5, 3, v2\nv_lshlrev_b32 v5, 3, v5\nv_add_u32 v4, v4, v5\nv_add_u32 v{VBR0}, 0x10000, v4\nv_xor_b32 v{VBR0+1}, 32, v{VBR0}\nv_mov_b32 v{VBR}, v{VBR0}\nv_mov_b32 v{VBR+1}, v{VBR0+1}")
    PF = opt.get("pf1", 0)
    if PF:
        o(f"s_cmp_ge_u32 s{sW}, 4\ns_cbranch_scc1 L_p1_pfa")
        o(f"s_cmp_ge_u32 s{sMB_}, 4\ns_cselect_b32 s{SPF}, s{SB1}, s{SB0}\ns_cselect_b32 s{SPF+1}, s{SB1+1}, s{SB0+1}\ns_cselect_b32 s{SPF+2}, s{SB1+2}, s{SB0+2}\ns_cselect_b32 s71, 2048, 0\ns_mov_b32 s{SPF+3}, 0x20000")
        o(f"s_and_b32 s72, s{sMB_}, 3\ns_lshl_b32 s72, s72, 4\ns_lshl_b32 s73, s{sW}, 2\ns_add_u32 s72, s72, s73\nv_lshrrev_b32 v4, 1, v2\nv_add_u32 v4, s72, v4\nv_mul_lo_u32 v4, v4, s{sSTR}")
        o(f"v_and_b32 v5, 1, v2\nv_lshlrev_b32 v5, 7, v5\nv_add_u32 v4, v4, v5\ns_add_u32 s71, s71, s65\nv_add_u32 v{VPF}, s71, v4\ns_mov_b32 s{sPFS}, s{sSTEP}\ns_mov_b64 s[{sPFX}:{sPFX+1}], 0xff\ns_branch L_p1_pfd")
        o(f"L_p1_pfa:\ns_mov_b32 s{SPF}, s{SA}\ns_mov_b32 s{SPF+1}, s{SA+1}\ns_mov_b32 s{SPF+2}, s{SA+2}\ns_mov_b32 s{SPF+3}, 0x20000")
        o(f"s_lshl_b32 s72, s2, 3\ns_sub_u32 s73, s{sW}, 4\ns_lshl_b32 s73, s73, 1\ns_add_u32 s72, s72, s73\nv_add_u32 v4, s72, v2\nv_lshlrev_b32 v{VPF}, 11, v4\ns_mov_b32 s{sPFS}, 128\ns_mov_b64 s[{sPFX}:{sPFX+1}], 3")
        o(f"L_p1_pfd:\ns_lshl_b32 s{sPFO}, s{sPFS}, 1\ns_mov_b64 exec, s[{sPFX}:{sPFX+1}]")
        for i in range(2, PF): o(f"buffer_load_dword v{VPF+1}, v{VPF}, s[{SPF}:{SPF+3}], s{sPFO} offen\ns_add_u32 s{sPFO}, s{sPFO}, s{sPFS}")
        o("s_mov_b64 exec, -1")
    npf = max(0, PF - 2)
    for i in range(128): o(f"v_mov_b32 v{ACC+i}, 0")
    o(f"s_waitcnt vmcnt({14+npf})\ns_barrier")
    stamp(o, opt, 1)
    for r in reads(0, 0): o(r)
    o(f"s_waitcnt vmcnt({8+npf})\nv_mov_b32 v14, 0\nv_mov_b32 v15, 0")
    for i in range(8):
        x, g, d = 64+i, 72+i, 80+i
        o(f"v_lshlrev_b32 v4, 16, v{x}\nv_and_b32 v5, 0xffff0000, v{x}\nv_lshlrev_b32 v6, 16, v{g}\nv_and_b32 v7, 0xffff0000, v{g}")
        o(f"v_lshlrev_b32 v8, 16, v{d}\nv_and_b32 v9, 0xffff0000, v{d}\nv_mul_f32 v6, v4, v6\nv_mul_f32 v7, v5, v7")
        o(f"v_fmac_f32 v15, v4, v8\nv_cvt_pk_bf16_f32 v6, v6, v7\nv_fmac_f32 v15, v5, v9")
        o(f"v_lshlrev_b32 v7, 16, v6\nv_and_b32 v6, 0xffff0000, v6\nv_add_f32 v14, v14, v7\nv_add_f32 v14, v14, v6")
    for dpp in ["quad_perm:[1,0,3,2]", "quad_perm:[2,3,0,1]", "row_half_mirror", "row_mirror"]:
        o(f"s_nop 1\nv_add_f32_dpp v14, v14, v14 {dpp} row_mask:0xf bank_mask:0xf\nv_add_f32_dpp v15, v15, v15 {dpp} row_mask:0xf bank_mask:0xf")
    o("s_nop 1")
    for i in range(4): o(f"v_readlane_b32 s{72+i}, v14, {16*i}\nv_readlane_b32 s{76+i}, v15, {16*i}")
    o("s_nop 1\nv_mov_b32 v14, s72\nv_mov_b32 v15, s76")
    for i in range(1, 4): o(f"v_add_f32 v14, s{72+i}, v14\nv_add_f32 v15, s{76+i}, v15")
    o("v_cvt_pk_bf16_f32 v14, v14, v14\nv_cvt_pk_bf16_f32 v15, v15, v15\nv_lshlrev_b32 v14, 16, v14")
    o(f"v_mul_f32 v14, {hx(f2u(-math.log2(math.e)))}, v14\nv_exp_f32 v14, v14\ns_nop 0\nv_add_f32 v14, 1.0, v14\nv_rcp_f32 v14, v14\ns_nop 0")
    o("v_cvt_pk_bf16_f32 v14, v14, v14\nv_lshlrev_b32 v14, 16, v14")
    o(f"s_lshl_b32 s72, s70, 2\ns_add_u32 s72, s72, {hx(WS_G)}")
    o("s_and_b32 s73, s70, 63\ns_lshl_b32 s73, s73, 6\ns_lshr_b32 s74, s70, 6")
    o("s_and_b32 s75, s74, 3\ns_and_b32 s76, s74, 12\ns_lshl_b32 s76, s76, 1\ns_or_b32 s75, s75, s76\ns_and_b32 s76, s74, 16\ns_lshr_b32 s76, s76, 2\ns_or_b32 s75, s75, s76")
    o(f"s_lshl_b32 s75, s75, 1\ns_add_u32 s73, s73, s75\ns_add_u32 s73, s73, {hx(WS_Z + 512*8192)}")
    o("v_mov_b32 v13, 0")
    o("s_mov_b64 exec, 1")
    o(f"buffer_store_dword v14, v13, s[{SWS}:{SWS+3}], s72 offen\nbuffer_store_short v15, v13, s[{SWS}:{SWS+3}], s73 offen")
    o("s_mov_b64 exec, -1")
    o(f"s_cmp_eq_u32 s{sDFT}, 1\ns_cbranch_scc1 L_loop_dft")
    mainloop(o, False, "ffn", opt)
    stamp(o, opt, 2)
    prefetch_wd(o, opt)
    c0 = -2.0 * math.sqrt(2.0/math.pi) * math.log2(math.e); c1 = c0 * 0.044715
    o(f"v_mov_b32 v14, {hx(f2u(c0))}\ns_mov_b32 s60, {hx(f2u(c1))}")
    o(f"s_and_b32 s61, s{sW}, 3\ns_lshr_b32 s62, s61, 1\ns_lshl_b32 s63, s{sNB}, 1\ns_add_u32 s62, s62, s63\ns_mul_i32 s62, s62, {H_SS}")
    o(f"s_and_b32 s61, s61, 1\ns_lshl_b32 s61, s61, 10\ns_add_u32 s62, s62, s61\ns_lshl_b32 s63, s{sMB_}, 1\ns_lshr_b32 s61, s{sW}, 2\ns_add_u32 s63, s63, s61\ns_mul_i32 s63, s63, {H_PS}\ns_add_u32 s62, s62, s63")
    o(f"s_add_u32 s62, s62, {hx(WS_H)}\nv_lshlrev_b32 v15, 4, v2\ns_nop 3")
    for mt in range(8):
        G = acc(mt, 0); U = acc(mt, 2)
        T = 16 + 16 * (mt & 1); P = 48 + 4 * (mt & 3)
        for i in range(8): o(f"v_mul_f32 v{T+i}, v{G+i}, v{G+i}")
        for i in range(8): o(f"v_fma_f32 v{T+i}, v{T+i}, s60, v14")
        for i in range(8): o(f"v_mul_f32 v{T+i}, v{T+i}, v{G+i}")
        for i in range(8): o(f"v_exp_f32 v{T+i}, v{T+i}")
        for i in range(8): o(f"v_mul_f32 v{T+8+i}, v{G+i}, v{U+i}")
        for i in range(8): o(f"v_add_f32 v{T+i}, 1.0, v{T+i}")
        for i in range(8): o(f"v_rcp_f32 v{T+i}, v{T+i}")
        o("s_nop 0")
        for i in range(8): o(f"v_mul_f32 v{T+i}, v{T+i}, v{T+8+i}")
        for i in range(4): o(f"v_cvt_pk_bf16_f32 v{P+i}, v{T+2*i}, v{T+2*i+1}")
        o(f"buffer_store_dwordx4 {vr(P,4)}, v15, s[{SWS}:{SWS+3}], s62 offen offset:{(mt&1)*2048} {opt.get('hst','sc1')}")
        if mt & 1: o("s_add_u32 s62, s62, 4096")
    if opt.get("touch", 0):
        o(f"v_lshrrev_b32 v4, 3, v2\nv_lshlrev_b32 v4, 11, v4\nv_and_b32 v5, 7, v2\nv_lshlrev_b32 v5, 7, v5\nv_add_u32 v4, v4, v5\ns_sub_u32 s62, s62, 16384\ns_waitcnt vmcnt(0)")
        o(f"buffer_load_dword v5, v4, s[{SWS}:{SWS+3}], s62 offen sc1")
    stamp_out(o, opt, 0, sW, SWS, 4)
    o("s_endpgm")
    mainloop(o, True, "dft", opt)
    stamp(o, opt, 2)
    PITCH = 272
    o(f"s_mul_i32 s61, s{sW}, {64*PITCH}\nv_and_b32 v4, 15, v2\nv_mul_u32_u24 v4, {PITCH}, v4\nv_and_b32 v5, 48, v2\nv_add_u32 v4, v4, v5\nv_add_u32 v14, s61, v4")
    o(f"v_lshrrev_b32 v4, 4, v2\nv_mul_u32_u24 v5, {PITCH}, v4\nv_and_b32 v6, 15, v2\nv_lshlrev_b32 v6, 4, v6\nv_add_u32 v5, v5, v6\nv_add_u32 v13, s61, v5")
    o(f"v_lshlrev_b32 v4, 13, v4\nv_add_u32 v15, v4, v6")
    o(f"s_and_b32 s61, s{sW}, 3\ns_lshl_b32 s61, s61, 5\ns_lshl_b32 s62, s{sNB}, 7\ns_add_u32 s61, s61, s62\ns_lshl_b32 s61, s61, 13")
    o(f"s_lshl_b32 s62, s{sMB_}, 9\ns_lshr_b32 s63, s{sW}, 2\ns_lshl_b32 s63, s63, 8\ns_add_u32 s62, s62, s63\ns_add_u32 s62, s62, s61\ns_add_u32 s64, s62, {hx(WS_Z)}")
    o("s_waitcnt vmcnt(0)\ns_barrier")
    prefetch_wd(o, opt)
    n = 0
    for nt in range(4):
        for u in range(4):
            A0 = acc(2*u, nt); A1 = acc(2*u+1, nt); P = 16 + 4*(n & 7); n += 1
            o(f"v_cvt_pk_bf16_f32 v{P}, v{A0}, v{A0+1}\nv_cvt_pk_bf16_f32 v{P+1}, v{A0+2}, v{A0+3}\nv_cvt_pk_bf16_f32 v{P+2}, v{A1}, v{A1+1}\nv_cvt_pk_bf16_f32 v{P+3}, v{A1+2}, v{A1+3}")
            o(f"ds_write_b128 v14, {vr(P,4)} offset:{nt*16*PITCH + u*64}")
    o("s_waitcnt lgkmcnt(0)")
    for i in range(16): o(f"ds_read_b128 {vr(48+4*i,4)}, v13 offset:{i*4*PITCH}")
    for i in range(16):
        nt, i4 = i >> 2, i & 3
        o(f"s_add_u32 s63, s64, {((nt&1)*16 + 4*i4)*8192 + (nt>>1)*4096}\ns_waitcnt lgkmcnt({15-i})")
        o(f"buffer_store_dwordx4 {vr(48+4*i,4)}, v15, s[{SWS}:{SWS+3}], s63 offen {opt.get('hst','sc1')}")
    o(f"s_lshl_b32 s60, s2, 3\ns_add_u32 s60, s60, s{sW}\ns_cmp_lg_u32 s60, {255*8}\ns_cbranch_scc1 L_p1_notag\ns_mov_b32 s60, {hx(WS_TAG)}\nv_mov_b32 v4, 0\ns_mov_b64 exec, 1")
    o(f"buffer_load_dword v5, v4, s[{SWS}:{SWS+3}], s60 offen sc1\ns_waitcnt vmcnt(0)\nv_add_u32 v5, 1, v5\nbuffer_store_dword v5, v4, s[{SWS}:{SWS+3}], s60 offen sc1\ns_mov_b64 exec, -1\nL_p1_notag:")
    stamp_out(o, opt, 0, sW, SWS, 4)
    o("L_p1_end:\ns_endpgm")
    return o.text(), kd(name, 256)
```

```python
from common import *
import math
NST = 5
NK = 28
SH, SWD, SWS, SOUT, SDBG = 24, 28, 32, 36, 40
sW, sPB, sET, sKH_, sN, sST, sK1, sK2, sLB = 48, 49, 50, 51, 52, 53, 54, 55, 56
ACC = 192
SETS = [128, 160]
VHR, VWR, VHB, VWB = 116, 117, 121, 122

def c_reads(st, kap):
    b = SETS[st]
    def w(u, rd): return f"ds_read_b64_tr_b16 {vr(b+16+4*u+2*rd,2)}, v{VWR+u} offset:{kap*8192+rd*4096}"
    def h(p): return f"ds_read_b128 {vr(b+4*p,4)}, v{VHR} offset:{p*2048+kap*1024}"
    return [w(0,0), w(0,1), h(0), w(1,0), w(1,1), h(1), w(2,0), w(2,1), h(2), w(3,0), w(3,1), h(3)]
def c_mfmas(st):
    b = SETS[st]; r = []
    for (p, u) in [(0,0),(0,1),(1,1),(1,0),(2,0),(2,1),(2,2),(1,2),(0,2),(0,3),(1,3),(2,3),(3,3),(3,2),(3,1),(3,0)]:
        A = vr(ACC + (p*4+u)*4, 4)
        r.append(f"v_mfma_f32_16x16x32_bf16 {A}, {vr(b+16+4*u,4)}, {vr(b+4*p,4)}, {A}")
    return r

def fft(o):
    ZA, ZB, C1, S1, N1 = 8, 24, 40, 48, 56
    U, TW, C3 = 64, 128, 192
    o(f"v_and_b32 v3, 31, v2\nv_lshrrev_b32 v4, 5, v2\nv_lshlrev_b32 v5, 6, v3\nv_lshlrev_b32 v6, 4, v4\nv_add_u32 v5, v5, v6")
    o(f"s_lshl_b32 s61, s60, 13\ns_add_u32 s61, s61, {hx(WS_Z)}\ns_add_u32 s62, s61, 4096")
    for part in range(2):
        for tile in range(2):
            for kap in range(2):
                o(f"buffer_load_dwordx4 {vr((ZA,ZB)[part]+(tile*2+kap)*4,4)}, v5, s[{SWS}:{SWS+3}], s{61+part} offen offset:{tile*2048+kap*32}")
    o("v_cvt_f32_u32 v210, v3\nv_cvt_f32_u32 v211, v4\nv_and_b32 v212, 1, v2\nv_mul_u32_u24 v212, 0x8000, v212\nv_mul_u32_u24 v212, 0x10001, v212")
    o("v_mul_f32 v211, v210, v211")
    def base(scale): o(f"v_mul_f32 v213, {hx(f2u(4.0*scale))}, v211")
    def cs(dc, ds, cst, scale, tmp):
        o(f"v_fmamk_f32 v{tmp}, v210, {hx(f2u(cst*scale))}, v213\nv_fract_f32 v{tmp}, v{tmp}")
        o(f"v_cos_f32 v{dc}, v{tmp}\nv_sin_f32 v{ds}, v{tmp}")
    def slot(j): return 8*(j >> 2) + (j & 3)
    base(1/32.)
    for j in range(8): cs(U+j, U+8+j, slot(j), 1/32., 214 + (j & 3))
    o("s_nop 0")
    for kap in range(2):
        for i in range(2):
            o(f"v_cvt_pk_bf16_f32 v{C1+4*kap+i}, v{U+4*kap+2*i}, v{U+4*kap+2*i+1}\nv_cvt_pk_bf16_f32 v{S1+4*kap+i}, v{U+8+4*kap+2*i}, v{U+8+4*kap+2*i+1}")
        for i in range(2):
            o(f"v_xor_b32 v{C1+4*kap+2+i}, v{C1+4*kap+i}, v212\nv_xor_b32 v{S1+4*kap+2+i}, v{S1+4*kap+i}, v212")
    for i in range(8): o(f"v_xor_b32 v{N1+i}, 0x80008000, v{S1+i}")
    base(1/64.)
    for kp in range(2):
        for j in range(8): cs(U+j, U+8+j, 16*kp + slot(j), 1/64., 214 + (j & 3))
        o("s_nop 0")
        for i in range(4):
            o(f"v_cvt_pk_bf16_f32 v{C3+4*kp+i}, v{U+2*i}, v{U+2*i+1}\nv_cvt_pk_bf16_f32 v{C3+8+4*kp+i}, v{U+8+2*i}, v{U+8+2*i+1}")
    base(1/2048.)
    for tile in range(2):
        for r in range(16):
            c = 32*tile + 8*(r >> 2) + (r & 3); t = 214 + (r & 3)
            o(f"v_fmamk_f32 v{t}, v210, {hx(f2u(c/2048.))}, v213\nv_cos_f32 v{TW+tile*16+r}, v{t}\nv_sin_f32 v{TW+32+tile*16+r}, v{t}")
    o("s_waitcnt vmcnt(0)")
    o("s_cmp_lg_u32 s60, 512\ns_cbranch_scc1 L_fft_nz")
    for i in range(16): o(f"v_mov_b32 v{ZB+i}, 0")
    o("L_fft_nz:\ns_nop 1")
    mf = "v_mfma_f32_32x32x16_bf16"
    for kap in range(2):
        for tile in range(2):
            za = vr(ZA+(tile*2+kap)*4, 4); zb = vr(ZB+(tile*2+kap)*4, 4)
            re = vr(U+tile*16, 16); im = vr(U+32+tile*16, 16)
            c0r = re if kap else "0"; c0i = im if kap else "0"
            o(f"{mf} {re}, {za}, {vr(C1+4*kap,4)}, {c0r}\n{mf} {im}, {zb}, {vr(C1+4*kap,4)}, {c0i}")
            o(f"{mf} {re}, {zb}, {vr(S1+4*kap,4)}, {re}\n{mf} {im}, {za}, {vr(N1+4*kap,4)}, {im}")
    C3X = 220
    for part in range(2):
        for kp in range(2):
            for i in range(4): o(f"v_xor_b32 v{C3X+8*part+4*kp+i}, v{C3+8*part+4*kp+i}, v212")
    def c3(part, kp): return (C3 if kp < 2 else C3X) + 8*part + 4*(kp & 1)
    for i in range(0, 32, 2):
        for d in range(2):
            k = i + d
            o(f"v_mul_f32 v{214+d}, v{U+k}, v{TW+k}\nv_mul_f32 v{216+d}, v{U+32+k}, v{TW+k}")
        for d in range(2):
            k = i + d
            o(f"v_fmac_f32 v{214+d}, v{U+32+k}, v{TW+32+k}\nv_fma_f32 v{216+d}, -v{U+k}, v{TW+32+k}, v{216+d}")
        o(f"v_cvt_pk_bf16_f32 v{8+i//2}, v214, v215\nv_cvt_pk_bf16_f32 v{24+i//2}, v216, v217")
    o("s_nop 1")
    first = True
    for kp in range(4):
        for part in range(2):
            Y = vr(U, 16)
            o(f"{mf} {Y}, {vr(c3(part,kp),4)}, {vr(8+16*part+4*kp,4)}, {'0' if first else Y}")
            first = False
            for i in range(4): o(f"v_xor_b32 v{TW+(kp*2+part)*4+i}, 0x80000000, v{c3(part,kp)+i}")
    o("s_nop 1")
    first = True
    for kp in range(4):
        for part in range(2):
            Y = vr(U+16, 16)
            o(f"{mf} {Y}, {vr(TW+(kp*2+part)*4,4)}, {vr(8+16*part+4*kp,4)}, {'0' if first else Y}")
            first = False
    o("v_lshlrev_b32 v5, 2, v3\nv_lshlrev_b32 v6, 9, v4\nv_add_u32 v5, v5, v6")
    o(f"s_lshl_b32 s61, s60, 13\ns_add_u32 s61, s61, {hx(WS_YT)}\ns_add_u32 s62, s61, 4096")
    for T in range(2):
        if T: o("s_nop 7")
        for r in range(16):
            o(f"buffer_store_dword v{U+16*T+r}, v5, s[{SWS}:{SWS+3}], s{61+T} offen offset:{(8*(r>>2)+(r&3))*128} sc1")

def gen_p2(opt):
    o = Asm()
    name = "p2_kernel"
    o(f".globl {name}\n.p2align 8\n.type {name},@function\n{name}:")
    o("s_cmp_ge_u32 s2, 256\ns_cbranch_scc1 L_p2_end")
    stamp(o, opt, 0)
    if opt.get("stamp"): o("s_mov_b64 s[84:85], 0\ns_mov_b64 s[86:87], 0\ns_mov_b64 s[88:89], 0\ns_mov_b64 s[90:91], 0\ns_mov_b64 s[92:93], 0\ns_mov_b64 s[94:95], 0")
    o("s_load_dwordx2 s[4:5], s[0:1], 64\ns_load_dwordx4 s[8:11], s[0:1], 80\ns_load_dwordx2 s[12:13], s[0:1], 96")
    o(f"v_lshrrev_b32 v1, 6, v0\nv_and_b32 v2, 63, v0\ns_nop 0\nv_readfirstlane_b32 s{sW}, v1")
    o(f"s_and_b32 s60, s2, 7\ns_lshr_b32 s61, s2, 3\ns_lshr_b32 s62, s60, 1\ns_lshl_b32 s62, s62, 2\ns_lshr_b32 s63, s61, 3\ns_add_u32 s{sPB}, s62, s63")
    o(f"s_add_u32 s61, s61, {opt.get('etrot',0)}\ns_and_b32 s{sET}, s61, 7\ns_and_b32 s{sKH_}, s60, 1")
    o(f"s_cmp_lt_u32 s{sW}, 4\ns_cbranch_scc1 L_p2_cons")
    VH, VWD = 24, 26
    o(f"s_sub_u32 s60, s{sW}, 4\ns_mul_i32 s61, s{sKH_}, {NK*H_SS}\ns_mul_i32 s62, s{sPB}, {H_PS}\ns_add_u32 s61, s61, s62\ns_lshl_b32 s{sLB}, s60, 12\ns_add_u32 s61, s61, s{sLB}")
    o(f"v_lshlrev_b32 v3, 4, v2\nv_add_u32 v{VH}, s61, v3")
    pairs = opt.get("pairs", [[2*i, 2*i+1] for i in range(8)])
    T0 = sum(pr[0] << (4*i) for i, pr in enumerate(pairs)); T1 = sum(pr[1] << (4*i) for i, pr in enumerate(pairs))
    o(f"s_lshl_b32 s62, s{sET}, 2\ns_lshr_b32 s57, {hx(T0)}, s62\ns_and_b32 s57, s57, 15\ns_lshr_b32 s58, {hx(T1)}, s62\ns_and_b32 s58, s58, 15")
    o(f"v_lshrrev_b32 v4, 4, v2\nv_lshlrev_b32 v5, 11, v4\nv_lshlrev_b32 v4, 1, v4\nv_and_b32 v6, 15, v2\nv_xor_b32 v4, v4, v6")
    o(f"s_mul_i32 s61, s{sKH_}, {1792*2048}\ns_lshl_b32 s62, s60, 15\ns_add_u32 s61, s61, s62\nv_add_u32 v5, s61, v5")
    o(f"v_and_b32 v6, 7, v4\nv_lshlrev_b32 v6, 4, v6\nv_add_u32 v5, v5, v6\ns_lshl_b32 s61, s57, 7\ns_lshl_b32 s62, s58, 7\nv_mov_b32 v6, s61\nv_mov_b32 v7, s62\nv_cmp_gt_u32 vcc, 8, v4\ns_nop 1")
    o(f"v_cndmask_b32 v8, v7, v6, vcc\nv_cndmask_b32 v9, v6, v7, vcc\nv_add_u32 v{VWD}, v5, v8\nv_add_u32 v{VWD+1}, v5, v9\nv_add_u32 v{VWD+1}, {8192-1024}, v{VWD+1}")
    o(f"v_add_u32 v{VWD+2}, {2*(8192-1024)}, v{VWD}\nv_add_u32 v{VWD+3}, {2*(8192-1024)}, v{VWD+1}")
    o(f"s_mov_b32 s{sK1}, 0\ns_mov_b32 s{sK2}, 0\ns_mov_b32 s{sST}, 0\ns_mov_b32 s{sN}, 0")
    o("s_waitcnt lgkmcnt(0)")
    srd(o, SWD, 4, 5, F*D*2)
    srd(o, SWS, 12, 13, WS_SIZE)
    def issue():
        if opt.get("noload") == 1:
            o(f"s_mov_b32 s{SWS+2}, 0\ns_mov_b32 s{SWD+2}, 0")
        if opt.get("noload") == 2:
            o(f"s_mov_b32 s{sK1}, 0\ns_mov_b32 s{sK2}, 0")
        o(f"s_add_u32 m0, s{sST}, s{sLB}\ns_nop 0")
        for j in range(4): o(f"buffer_load_dwordx4 v{VH}, s[{SWS}:{SWS+3}], s{sK1} offen offset:{j*1024} lds")
        o(f"s_add_u32 m0, m0, 16384\ns_nop 0")
        for j in range(4): o(f"buffer_load_dwordx4 v{VWD+j}, s[{SWD}:{SWD+3}], s{sK2} offen offset:{j*1024} lds")
        o(f"s_add_u32 s{sK1}, s{sK1}, {H_SS}\ns_add_u32 s{sK2}, s{sK2}, 131072")
        o(f"s_add_u32 s{sST}, s{sST}, 32768\ns_cmp_ge_u32 s{sST}, {NST*32768}\ns_cselect_b32 s{sST}, 0, s{sST}")
    o("L_p2_lpro:"); issue()
    o(f"s_add_u32 s{sN}, s{sN}, 1\ns_cmp_lt_u32 s{sN}, {NST-1}\ns_cbranch_scc1 L_p2_lpro")
    srd(o, SOUT, 8, 9, S*D*2)
    srd(o, SDBG, 10, 11, 256)
    o(f"v_mov_b32 v9, 0\ns_mov_b32 s{sN}, 0\nL_p2_lloop:\ns_waitcnt vmcnt(24)\ns_barrier")
    issue()
    o(f"s_add_u32 s{sN}, s{sN}, 1\ns_cmp_lt_u32 s{sN}, 21\ns_cbranch_scc1 L_p2_lloop")
    if opt.get("noload"): o(f"s_mov_b32 s{SWS+2}, {hx(WS_SIZE)}")
    o(f"buffer_load_dword v10, v9, s[{SDBG}:{SDBG+3}], 0 offen sc1")
    o(f"s_lshl_b32 s63, s{sPB}, 7\ns_lshl_b32 s64, s60, 5\ns_add_u32 s63, s63, s64\nv_and_b32 v4, 15, v2\nv_add_u32 v4, s63, v4\nv_lshrrev_b32 v5, 4, v2")
    o(f"s_cmp_eq_u32 s{sKH_}, 0\ns_cselect_b32 s64, s57, s58\ns_lshl_b32 s64, s64, 6")
    o("v_lshlrev_b32 v6, 2, v4\nv_lshlrev_b32 v7, 15, v5\ns_cmp_ge_u32 s64, 512\ns_cbranch_scc1 L_p2_mir")
    o(f"v_add_u32 v12, v6, v7\nv_add_u32 v13, 64, v12\ns_lshl_b32 s66, s64, 13\ns_mov_b32 s67, 8192\ns_branch L_p2_mird\nL_p2_mir:")
    o(f"v_sub_u32 v12, 0x800, v4\nv_subrev_u32 v13, 16, v12\nv_and_b32 v12, 0x7ff, v12\nv_lshlrev_b32 v12, 2, v12\nv_lshlrev_b32 v13, 2, v13\nv_sub_u32 v7, 0x18000, v7\nv_add_u32 v12, v12, v7\nv_add_u32 v13, v13, v7")
    o(f"s_sub_u32 s66, 1012, s64\ns_lshl_b32 s66, s66, 13\ns_mov_b32 s67, -8192\nL_p2_mird:\ns_add_u32 s66, s66, {hx(WS_YT)}")
    for m in range(21, 24):
        o("s_waitcnt vmcnt(25)\ns_barrier")
        issue()
        if opt.get("noload"): o(f"s_mov_b32 s{SWS+2}, {hx(WS_SIZE)}")
    o("s_waitcnt vmcnt(24)\ns_barrier")
    o(f"L_p2_poll1:\nv_readfirstlane_b32 s68, v10\ns_nop 3\ns_cmp_ge_u32 s68, 256\ns_cbranch_scc1 L_p2_poll1d\ns_sleep 1\nbuffer_load_dword v10, v9, s[{SDBG}:{SDBG+3}], 0 offen sc1\ns_waitcnt vmcnt(0)\ns_branch L_p2_poll1\nL_p2_poll1d:")
    o(f"s_mov_b32 s68, {hx(WS_G)}\nbuffer_load_dword v14, v6, s[{SWS}:{SWS+3}], s68 offen\nbuffer_load_dword v15, v6, s[{SWS}:{SWS+3}], s68 offen offset:64")
    o(f"s_mov_b32 s68, {hx(WS_TAG)}\nbuffer_load_dword v18, v9, s[{SWS}:{SWS+3}], s68 offen")
    Y0 = 32
    for u in range(4):
        for r in range(4):
            o(f"s_mul_i32 s68, s67, {16*u+r}\ns_add_u32 s68, s68, s66")
            for a in range(2): o(f"buffer_load_dword v{Y0+(a*4+u)*4+r}, v{12+a}, s[{SWS}:{SWS+3}], s68 offen sc1")
    o("s_waitcnt vmcnt(51)\ns_barrier\ns_waitcnt vmcnt(43)\ns_barrier\ns_waitcnt vmcnt(35)\ns_barrier")
    o("v_lshlrev_b32 v6, 11, v4\nv_and_b32 v7, 16, v2\nv_lshlrev_b32 v7, 1, v7\nv_add_u32 v6, v6, v7\nv_lshrrev_b32 v7, 5, v2\nv_lshlrev_b32 v7, 4, v7\nv_add_u32 v6, v6, v7\ns_lshl_b32 s64, s64, 1\ns_add_u32 s65, s64, 32768")
    o(f"s_lshl_b32 s62, s60, 13\nv_lshlrev_b32 v3, 4, v2\nv_add_u32 v3, s62, v3\nv_add_u32 v8, 4096, v3")
    o("s_waitcnt vmcnt(0)")
    for a in range(2):
        o(f"v_sub_f32 v{16+a}, 1.0, v{14+a}\nv_cvt_pk_bf16_f32 v{16+a}, v{16+a}, v{16+a}\nv_lshlrev_b32 v{16+a}, 16, v{16+a}")
        for i in range(16): o(f"v_mul_f32 v{Y0+16*a+i}, v{14+a}, v{Y0+16*a+i}")
    O0, X0 = 64, 96
    o(f"s_mul_i32 s66, s2, {XB_S}\ns_add_u32 s66, s66, {hx(WS_XB)}\ns_mov_b32 s67, 0xfffff000")
    o("s_barrier")
    stamp(o, opt, 3)
    for i in range(8): o(f"ds_read_b128 {vr(O0+4*i,4)}, v3 offset:{i*1024}")
    o("L_p2_poll2:")
    for i in range(8): o(f"buffer_load_dwordx4 {vr(X0+4*i,4)}, v{3 if i < 4 else 8}, s[{SWS}:{SWS+3}], s66 offen offset:{(i&3)*1024} sc1")
    o("v_mov_b32 v19, 0")
    for i in range(8):
        o(f"s_waitcnt vmcnt({7-i})")
        for j in range(4): o(f"v_bitop3_b32 v19, v19, v{X0+4*i+j}, v18 bitop3:0xf6")
    o("v_and_b32 v19, 0xfff, v19\nv_cmp_ne_u32 vcc, 0, v19\ns_cbranch_vccnz L_p2_poll2")
    o("s_waitcnt lgkmcnt(0)")
    for i in range(32): o(f"v_and_b32 v{X0+i}, s67, v{X0+i}\nv_add_f32 v{X0+i}, v{X0+i}, v{O0+i}")
    for a in range(2):
        for i in range(16): o(f"v_fmac_f32 v{Y0+16*a+i}, v{16+a}, v{X0+16*a+i}")
        P = 128 + 8*a
        for u in range(4):
            d = P + 4*(u >> 1) + 2*(u & 1)
            o(f"v_cvt_pk_bf16_f32 v{d}, v{Y0+16*a+4*u}, v{Y0+16*a+4*u+1}\nv_cvt_pk_bf16_f32 v{d+1}, v{Y0+16*a+4*u+2}, v{Y0+16*a+4*u+3}")
        o(f"s_nop 1\nv_permlane16_swap_b32 v{P}, v{P+2}\nv_permlane16_swap_b32 v{P+1}, v{P+3}\nv_permlane16_swap_b32 v{P+4}, v{P+6}\nv_permlane16_swap_b32 v{P+5}, v{P+7}")
        o(f"buffer_store_dwordx4 {vr(P,4)}, v6, s[{SOUT}:{SOUT+3}], s{64+a} offen\nbuffer_store_dwordx4 {vr(P+4,4)}, v6, s[{SOUT}:{SOUT+3}], s{64+a} offen offset:64")
    stamp_out(o, opt, 1, sW, SWS, 5)
    if opt.get("dbgout"):
        o(f"s_lshl_b32 s60, s2, 3\ns_add_u32 s60, s60, s{sW}\ns_cmp_lg_u32 s60, {opt['dbgout']*8+4}\ns_cbranch_scc1 L_p2_end")
        o(f"v_lshlrev_b32 v3, 2, v2\ns_mov_b32 s61, {hx(WS_ST + (opt['dbgout']*8+4)*64)}\ns_mov_b64 exec, 0xff\nbuffer_load_dword v4, v3, s[{SWS}:{SWS+3}], s61 offen sc1\ns_waitcnt vmcnt(0)\nbuffer_store_dword v4, v3, s[{SDBG}:{SDBG+3}], 0 offen offset:4")
        o(f"s_mov_b64 exec, 1\nv_mov_b32 v4, s80\nv_mov_b32 v5, s82\nv_mov_b32 v6, s96\nv_mov_b32 v7, s98\nbuffer_store_dwordx4 v[4:7], v3, s[{SDBG}:{SDBG+3}], 0 offen offset:48")
        o(f"v_mov_b32 v4, s92\nv_mov_b32 v5, s94\nbuffer_store_dwordx2 v[4:5], v3, s[{SDBG}:{SDBG+3}], 0 offen offset:40")
    o("s_endpgm")
    o("L_p2_cons:\ns_waitcnt lgkmcnt(0)")
    srd(o, SWS, 12, 13, WS_SIZE)
    srd(o, SDBG, 10, 11, 256)
    if opt.get("fft3", 1):
        o(f"s_and_b32 s61, s{sET}, 3\ns_cmp_eq_u32 s61, 1\ns_cbranch_scc1 L_p2_nofft\ns_cmp_eq_u32 s{sW}, 3\ns_cbranch_scc1 L_p2_nofft")
        o(f"s_max_u32 s61, s61, 1\ns_sub_u32 s61, s61, 1\ns_lshr_b32 s62, s2, 5\ns_mul_i32 s62, s62, 3\ns_add_u32 s61, s61, s62\ns_lshl_b32 s61, s61, 3\ns_and_b32 s62, s2, 7\ns_add_u32 s61, s61, s62")
        o(f"s_mul_i32 s60, s61, 3\ns_add_u32 s60, s60, s{sW}\ns_cmp_gt_u32 s60, 512\ns_cbranch_scc1 L_p2_nofft")
    else:
        o(f"s_lshl_b32 s60, s2, 1\ns_add_u32 s60, s60, s{sW}\ns_cmp_lt_u32 s{sW}, 2\ns_cbranch_scc1 L_p2_fft")
        o(f"s_mov_b32 s60, 512\ns_lshl_b32 s61, s2, 2\ns_add_u32 s61, s61, s{sW}\ns_cmp_lg_u32 s61, 2\ns_cbranch_scc1 L_p2_nofft")
    o("L_p2_fft:")
    if not opt.get("nofft"): fft(o)
    o("L_p2_nofft:")
    o(f"s_and_b32 s60, s{sW}, 1\ns_lshl_b32 s60, s60, 13\nv_lshlrev_b32 v3, 4, v2\nv_add_u32 v{VHB}, s60, v3")
    o(f"s_lshr_b32 s61, s{sW}, 1\ns_lshl_b32 s61, s61, 2\nv_lshrrev_b32 v4, 2, v2\nv_and_b32 v5, 7, v4\nv_xor_b32 v5, s61, v5\nv_lshlrev_b32 v4, 8, v4")
    o("v_and_b32 v6, 3, v2\nv_lshlrev_b32 v6, 3, v6\nv_add_u32 v4, v4, v6\nv_add_u32 v4, 0x4000, v4\nv_lshlrev_b32 v5, 5, v5")
    o(f"v_add_u32 v{VWB}, v4, v5")
    for u in range(1, 4): o(f"v_xor_b32 v{VWB+u}, {32*u}, v{VWB}")
    o(f"v_mov_b32 v{VHR}, v{VHB}")
    for u in range(4): o(f"v_mov_b32 v{VWR+u}, v{VWB+u}")
    for i in range(64): o(f"v_mov_b32 v{ACC+i}, 0")
    o(f"s_mov_b32 s{sN}, 0\ns_mov_b32 s{sST}, 0\ns_cmp_eq_u32 s{sW}, 0\ns_cselect_b32 s{sK1}, 1, 99\nv_mov_b32 v3, 0\nv_mov_b32 v4, 1")
    o(f"s_mov_b32 s61, {hx(WS_TAG)}\nbuffer_load_dword v5, v3, s[{SWS}:{SWS+3}], s61 offen")
    stamp(o, opt, 1)
    o("s_barrier")
    for r in c_reads(0, 0): o(r)
    o(".p2align 6\nL_p2_cloop:")
    rp = opt.get("rp", 2)
    for q4 in range(4):
        half = q4 & 1
        M = c_mfmas(half); R = c_reads(half ^ 1, half ^ 1)
        gaps = [[] for _ in range(16)]
        for i in range(12): gaps[i // rp].append(R[i])
        def issued(g): return min(12, (g + 1) * rp)
        if q4 == 3:
            o("s_waitcnt lgkmcnt(0)\ns_cbranch_scc1 L_p2_nobar\ns_barrier\nL_p2_nobar:")
            gaps[13].append(f"s_cmp_eq_u32 s{sN}, s{sK1}\ns_cbranch_scc1 L_p2_sig\nL_p2_sigd:")
            gaps[15].append(f"s_add_u32 s{sN}, s{sN}, 1\ns_cmp_lt_u32 s{sN}, {NK//2}")
        elif q4 == 1:
            o("s_waitcnt lgkmcnt(0)\ns_barrier")
        else:
            o("s_waitcnt lgkmcnt(6)")
            gaps[3].append(f"s_waitcnt lgkmcnt({min(15, 3 + issued(3))})")
            gaps[8].append(f"s_waitcnt lgkmcnt({issued(8)})")
        if half == 0:
            gaps[9].append(f"s_add_u32 s{sST}, s{sST}, 32768\ns_cmp_ge_u32 s{sST}, {NST*32768}")
            gaps[10].append(f"s_cselect_b32 s{sST}, 0, s{sST}")
            gaps[11].append(f"v_add_u32 v{VHR}, s{sST}, v{VHB}"); gaps[12].append(f"v_add_u32 v{VWR}, s{sST}, v{VWB}")
            gaps[13].append(f"v_add_u32 v{VWR+1}, s{sST}, v{VWB+1}"); gaps[14].append(f"v_add_u32 v{VWR+2}, s{sST}, v{VWB+2}")
            gaps[15].append(f"v_add_u32 v{VWR+3}, s{sST}, v{VWB+3}")
        if q4 == 1: gaps[12].append(f"s_cmp_eq_u32 s{sN}, 1\ns_cbranch_scc1 L_p2_drain\nL_p2_draind:")
        if q4 == 2: gaps[15].append(f"s_cmp_eq_u32 s{sN}, {NK//2-1}")
        for i in range(16):
            if not opt.get("nomfma"): o(M[i])
            for g in gaps[i]:
                if opt.get("nomfma") and g.startswith("ds_read"): continue
                o(g)
    o("s_cbranch_scc1 L_p2_cloop")
    stamp(o, opt, 2)
    o(f"s_waitcnt lgkmcnt(0)\ns_nop 7\ns_lshr_b32 s60, s{sW}, 1\ns_and_b32 s61, s{sW}, 1\ns_lshl_b32 s61, s61, 14\nv_lshlrev_b32 v3, 4, v2")
    o(f"s_cmp_eq_u32 s60, s{sKH_}\ns_cbranch_scc1 L_p2_own")
    o(f"s_xor_b32 s62, s2, 1\ns_mul_i32 s62, s62, {XB_S}\ns_add_u32 s62, s62, s61\ns_add_u32 s62, s62, {hx(WS_XB)}")
    o("s_movk_i32 s63, 0xfff\ns_waitcnt vmcnt(0)")
    for i in range(16):
        for j in range(4): o(f"v_bfi_b32 v{ACC+4*i+j}, s63, v5, v{ACC+4*i+j}")
        o(f"buffer_store_dwordx4 {vr(ACC+4*i,4)}, v3, s[{SWS}:{SWS+3}], s62 offen offset:{(i&3)*1024} sc1")
        if (i & 3) == 3: o("s_add_u32 s62, s62, 4096")
    o("s_barrier\ns_branch L_p2_cend")
    o("L_p2_own:\nv_add_u32 v3, s61, v3")
    for i in range(16): o(f"ds_write_b128 v3, {vr(ACC+4*i,4)} offset:{i*1024}")
    o("s_waitcnt lgkmcnt(0)\ns_barrier")
    o("L_p2_cend:")
    stamp(o, opt, 3)
    stamp_out(o, opt, 1, sW, SWS, 5)
    o("L_p2_end:\ns_endpgm")
    o(f"L_p2_sig:\ns_mov_b64 exec, 1\nbuffer_atomic_add v4, v3, s[{SDBG}:{SDBG+3}], 0 offen sc1\ns_mov_b64 exec, -1\ns_branch L_p2_sigd\nL_p2_drain:\ns_waitcnt vmcnt(0)\ns_branch L_p2_draind")
    return o.text(), kd(name, 256)
```

```python
from common import *
import math

ACC = 128
def acc(mt, i, mat): return ACC + (mt * 8 + i * 2 + mat) * 4
SETS = [dict(X=16, W=32), dict(X=64, W=80)]
VAR, VBR, VBR0, VAD, VBD = 112, 114, 118, 122, 126
SA, SB0, SB1, SWS, SM1 = 24, 28, 32, 36, 40
sW, sMB_, sNB, sKA, sKB, sMA, sC, sN, sWB, sROW = 48, 49, 50, 53, 54, 56, 57, 58, 59, 70
SPF, sPFX, sPFO, sPFS = 96, 94, 92, 93
STR = 7168
ZP = 16512

def reads(st, ks, nf):
    s = SETS[st]
    def w(n, rd): return f"ds_read_b64_tr_b16 {vr(s['W']+n*4+rd*2,2)}, v{VBR+(n>>1)} offset:{ks*16384+(n&1)*2048+rd*1024}"
    def x(mt): return f"ds_read_b128 {vr(s['X']+mt*4,4)}, v{VAR+ks} offset:{mt*2048}"
    r = [x(0)]
    for n in range(2*nf):
        r += [w(n, 0), w(n, 1)]
    r += [x(1), x(2), x(3)]
    return r

def mfmas(st, nf, zero=False):
    s = SETS[st]; r = []
    for mt in range(4):
        for n in (range(2*nf) if mt % 2 == 0 else range(2*nf-1, -1, -1)):
            A = vr(acc(mt, n >> 1, n & 1), 4)
            r.append(f"v_mfma_f32_16x16x32_bf16 {A}, {vr(s['W']+n*4,4)}, {vr(s['X']+mt*4,4)}, {'0' if zero else A}")
    return r

def dmaA(j): return f"buffer_load_dwordx4 v{VAD+j}, s[{SA}:{SA+3}], s{sKA} offen offset:{j*1024} lds"
def dmaB(j):
    srdn = SB0 if j < 2 else SB1
    return f"buffer_load_dwordx4 v{VBD+(j&1)}, s[{srdn}:{srdn+3}], s{sKB} offen offset:{j*1024} lds"

def mainloop(o, nf, opt):
    tag = f"n{nf}"; NG = 8*nf; PF = opt.get("pf1", 4)
    for blk, ks in enumerate((0, 0, 1)):
        if blk == 1: o(f"s_branch L_mid_{tag}\n.p2align 6\nL_loop_{tag}:")
        if blk == 2: o(f"L_mid_{tag}:")
        M = mfmas(ks, nf, blk == 0); R = reads(ks ^ 1, ks ^ 1, nf); nr = len(R)
        gaps = [[] for _ in range(NG)]
        for i in range(nr): gaps[i].append(R[i])
        if ks == 0:
            pre = "s_waitcnt lgkmcnt(0)"
            gaps[1].append(f"s_add_u32 m0, s{sC}, s{sWB}")
            for j in range(4): gaps[2+4*j].append(dmaB(j))
            gaps[3].append(f"s_add_u32 s60, s{sC}, 32768\ns_cmp_ge_u32 s60, 98304\ns_cselect_b32 s{sC}, 0, s60")
            gaps[5].append(f"s_add_u32 s60, s{sC}, 32768\ns_cmp_ge_u32 s60, 98304\ns_cselect_b32 s61, 0, s60")
            gaps[15].append(f"s_add_u32 s{sKB}, s{sKB}, {64*STR}\ns_add_u32 s{sKA}, s{sKA}, 128")
            gaps[nr].append(f"v_xor_b32 v{VAR}, 0x8000, v{VAR}"); gaps[nr+1].append(f"v_xor_b32 v{VAR+1}, 0x8000, v{VAR+1}")
            for i in range(nf): gaps[nr+2+i].append(f"v_add_u32 v{VBR+i}, s61, v{VBR0+i}")
            if PF: gaps[NG-2].append(f"s_mov_b64 exec, s[{sPFX}:{sPFX+1}]\nbuffer_load_dword v1, v0, s[{SPF}:{SPF+3}], s{sPFO} offen\ns_mov_b64 exec, -1\ns_add_u32 s{sPFO}, s{sPFO}, s{sPFS}")
        else:
            pre = f"s_cmp_ge_u32 s{sN}, 14\ns_cselect_b32 s{SA+2}, 0, s{SA+2}\ns_mov_b32 m0, s{sMA}\ns_waitcnt vmcnt({5 if PF else 4}) lgkmcnt(0)\ns_barrier"
            for j in range(4): gaps[2*j].append(dmaA(j))
            gaps[nr].append(f"s_cmp_ge_u32 s{sN}, 13\ns_cselect_b32 s{SB0+2}, 0, s{SB0+2}\ns_cselect_b32 s{SB1+2}, 0, s{SB1+2}")
            gaps[NG-1].append(f"s_xor_b32 s{sMA}, s{sMA}, 0x8000\ns_add_u32 s{sN}, s{sN}, 1\ns_cmp_lt_u32 s{sN}, 16")
        if blk == 0 and nf == 3:
            fl = []
            for dpp in ["quad_perm:[1,0,3,2]", "quad_perm:[2,3,0,1]", "row_half_mirror", "row_mirror"]:
                fl.append(f"v_add_f32_dpp v14, v14, v14 {dpp} row_mask:0xf bank_mask:0xf\nv_add_f32_dpp v15, v15, v15 {dpp} row_mask:0xf bank_mask:0xf")
            for i in range(4): fl.append(f"v_readlane_b32 s{72+i}, v14, {16*i}\nv_readlane_b32 s{76+i}, v15, {16*i}")
            fl.append("s_nop 0"); fl.append("v_mov_b32 v14, s72\nv_mov_b32 v15, s76")
            for i in range(1, 4): fl.append(f"v_add_f32 v14, s{72+i}, v14\nv_add_f32 v15, s{76+i}, v15")
            fl += ["v_cmp_eq_u32 vcc, 1, v2", "s_nop 0", "v_cndmask_b32 v14, v14, v15, vcc", "v_cvt_pk_bf16_f32 v14, v14, v14", "v_lshlrev_b32 v14, 16, v14",
                   f"v_mul_f32 v14, {hx(f2u(-math.log2(math.e)))}, v14", "v_exp_f32 v14, v14", "v_add_f32 v14, 1.0, v14", "v_rcp_f32 v14, v14",
                   "v_cvt_pk_bf16_f32 v14, v14, v14", "v_lshlrev_b32 v14, 16, v14"]
            for i, f_ in enumerate(fl): gaps[i].append(f_)
        o(pre)
        for i in range(NG):
            o(M[i])
            for g in gaps[i]: o(g)
    o(f"s_cbranch_scc1 L_loop_{tag}\ns_waitcnt lgkmcnt(0)")

def prefetch_wd(o, opt):
    srd(o, SM1, 20, 21, F*D*2)
    o(f"s_mul_i32 s60, s2, 28672\ns_mul_i32 s61, s{sW}, 3584\ns_add_u32 s60, s60, s61\nv_lshlrev_b32 v12, 7, v2")
    o(f"s_mov_b64 exec, 0xfffffff\nbuffer_load_dword v1, v12, s[{SM1}:{SM1+3}], s60 offen")
    if opt.get("hot", 0):
        o(f"s_and_b32 s60, s2, 1\ns_mul_i32 s60, s60, {1792*2048}\ns_lshr_b32 s61, s2, 3\ns_lshl_b32 s61, s61, 3\ns_add_u32 s61, s61, s{sW}\ns_mul_i32 s61, s61, {7*2048}\ns_add_u32 s60, s60, s61\ns_add_u32 s60, s60, 384")
        o(f"v_lshlrev_b32 v12, 10, v2\ns_mov_b64 exec, 0x3fff\nbuffer_load_dword v1, v12, s[{SM1}:{SM1+3}], s60 offen")
    o("s_mov_b64 exec, -1")

def epilogue(o, nf, opt):
    hst = opt.get('hst', 'sc1')
    o(f"s_and_b32 s60, s2, 63\ns_lshl_b32 s60, s60, 2\ns_lshr_b32 s61, s2, 6\ns_add_u32 s60, s60, s61\ns_mul_i32 s60, s60, {ZP}\ns_add_u32 s60, s60, {hx(WS_Z)}")
    o(f"s_lshl_b32 s61, s{sW}, 11\ns_add_u32 s61, s61, s60\ns_lshl_b32 s62, s{sW}, 2\ns_add_u32 s62, s62, s60\ns_add_u32 s62, s62, 16384\ns_lshl_b32 s63, s{sROW}, 2\ns_add_u32 s63, s63, {hx(WS_G)}")
    o(f"buffer_store_dwordx4 v[4:7], v3, s[{SWS}:{SWS+3}], s61 offen {hst}\nbuffer_store_dwordx4 v[8:11], v3, s[{SWS}:{SWS+3}], s61 offen offset:1024 {hst}")
    if nf == 4: o(f"s_mov_b64 exec, 1\nbuffer_store_dword v12, v3, s[{SWS}:{SWS+3}], s62 offen\ns_mov_b64 exec, -1\ns_nop 0")
    else: o(f"v_lshlrev_b32 v13, 8, v2\ns_mov_b64 exec, 3\nbuffer_store_dword v14, v13, s[{SWS}:{SWS+3}], s63 offen\ns_mov_b64 exec, -1")
    prefetch_wd(o, opt)
    c0 = -2.0 * math.sqrt(2.0/math.pi) * math.log2(math.e); c1 = c0 * 0.044715
    o(f"v_mov_b32 v12, {hx(f2u(c0))}\ns_mov_b32 s60, {hx(f2u(c1))}\nv_lshlrev_b32 v13, 3, v2")
    o(f"s_mul_i32 s61, s{sNB}, 7\ns_add_u32 s61, s61, {0 if nf == 4 else 4}\ns_lshl_b32 s62, s{sMB_}, 1\ns_bfe_u32 s63, s{sW}, 0x10001\ns_add_u32 s62, s62, s63\ns_mul_i32 s62, s62, {H_PS}\ns_and_b32 s63, s{sW}, 1\ns_lshl_b32 s63, s63, 11\ns_add_u32 s62, s62, s63\ns_add_u32 s62, s62, {hx(WS_H)}")
    for i in range(nf):
        o(f"s_add_u32 s63, s61, {i}\ns_lshr_b32 s71, s63, 2\ns_mul_i32 s71, s71, {H_SS}\ns_and_b32 s63, s63, 3\ns_lshl_b32 s63, s63, 12\ns_add_u32 s63, s63, s71\ns_add_u32 s{64+i}, s62, s63")
    units = [(mt, i) for i in range(nf) for mt in range(4)]
    for b in range(0, len(units), 2):
        us = units[b:b+2]
        T = 16 + 16 * ((b >> 1) & 1); P = 48 + 4 * ((b >> 1) & 3)
        G = [acc(mt, i, 0) + r for (mt, i) in us for r in range(4)]; U = [g + 4 for g in G]
        for k in range(8): o(f"v_mul_f32 v{T+k}, v{G[k]}, v{G[k]}")
        for k in range(8): o(f"v_fma_f32 v{T+k}, v{T+k}, s60, v12")
        for k in range(8): o(f"v_mul_f32 v{T+k}, v{T+k}, v{G[k]}")
        for k in range(8): o(f"v_exp_f32 v{T+k}, v{T+k}")
        for k in range(8): o(f"v_mul_f32 v{T+8+k}, v{G[k]}, v{U[k]}")
        for k in range(8): o(f"v_add_f32 v{T+k}, 1.0, v{T+k}")
        for k in range(8): o(f"v_rcp_f32 v{T+k}, v{T+k}")
        o("s_nop 0")
        for k in range(8): o(f"v_mul_f32 v{T+k}, v{T+k}, v{T+8+k}")
        for k in range(4): o(f"v_cvt_pk_bf16_f32 v{P+k}, v{T+2*k}, v{T+2*k+1}")
        for n, (mt, i) in enumerate(us):
            o(f"buffer_store_dwordx2 {vr(P+2*n,2)}, v13, s[{SWS}:{SWS+3}], s{64+i} offen offset:{mt*512} {hst}")

def dma_addrs(o):
    o(f"s_lshl_b32 s66, s{sMB_}, 8\ns_lshl_b32 s67, s{sW}, 5\ns_add_u32 s66, s66, s67\ns_lshl_b32 s66, s66, 11")
    o("v_lshrrev_b32 v4, 3, v2\nv_lshlrev_b32 v4, 11, v4\nv_add_u32 v4, s66, v4")
    o("v_and_b32 v5, 7, v2\nv_lshrrev_b32 v6, 4, v2\nv_xor_b32 v5, v5, v6\nv_lshlrev_b32 v5, 4, v5")
    o(f"v_add_u32 v{VAD}, v4, v5\nv_xor_b32 v5, 64, v5\nv_add_u32 v4, v4, v5\nv_add_u32 v{VAD+1}, {16384-1024}, v4\nv_add_u32 v{VAD+2}, {2*(16384-1024)}, v{VAD}\nv_add_u32 v{VAD+3}, {2*(16384-1024)}, v{VAD+1}")
    o(f"s_lshl_b32 s66, s{sW}, 3\nv_add_u32 v5, s66, v6\nv_mul_u32_u24 v5, {STR}, v5\ns_and_b32 s66, s{sW}, 1\ns_lshl_b32 s66, s66, 1\ns_mul_i32 s65, s{sNB}, 224")
    o("v_lshlrev_b32 v4, 2, v6\nv_and_b32 v6, 15, v2\nv_xor_b32 v4, v4, v6\nv_xor_b32 v4, s66, v4\nv_cmp_gt_u32 vcc, 14, v4\nv_lshlrev_b32 v4, 4, v4\nv_add_u32 v5, v5, v4\nv_add_u32 v5, s65, v5\nv_mov_b32 v4, 0x7f000000")
    o(f"v_cndmask_b32 v{VBD}, v4, v5, vcc\nv_add_u32 v{VBD+1}, {4*STR-1024}, v{VBD}")

def loop_addrs(o, opt, t):
    a, b, c, d = t, t+1, t+2, t+3
    o(f"s_and_b32 s66, s{sW}, 3\ns_lshl_b32 s66, s66, 13\nv_and_b32 v{a}, 15, v2\nv_lshlrev_b32 v{b}, 7, v{a}\nv_add_u32 v{b}, s66, v{b}")
    o(f"v_lshrrev_b32 v{c}, 1, v{a}\nv_lshrrev_b32 v{d}, 4, v2\nv_xor_b32 v{c}, v{c}, v{d}")
    o(f"v_lshlrev_b32 v{c}, 4, v{c}\nv_add_u32 v{VAR}, v{b}, v{c}\nv_xor_b32 v{VAR+1}, 64, v{VAR}")
    o(f"v_lshrrev_b32 v{a}, 2, v2\nv_and_b32 v{a}, 3, v{a}\nv_lshlrev_b32 v{b}, 1, v{a}\nv_and_b32 v{c}, 1, v{d}\nv_add_u32 v{b}, v{b}, v{c}\ns_and_b32 s66, s{sW}, 4\nv_xor_b32 v{b}, s66, v{b}\nv_lshlrev_b32 v{b}, 5, v{b}")
    o(f"v_lshlrev_b32 v{a}, 8, v{a}\nv_add_u32 v{a}, v{a}, v{b}\nv_lshlrev_b32 v{b}, 12, v{d}\nv_add_u32 v{a}, v{a}, v{b}\nv_and_b32 v{b}, 3, v2\nv_lshlrev_b32 v{b}, 3, v{b}\nv_add_u32 v{a}, v{a}, v{b}\nv_add_u32 v{VBR0}, 0x10000, v{a}")
    for i in range(1, 4): o(f"v_xor_b32 v{VBR0+i}, {32*i}, v{VBR0}")
    for i in range(4): o(f"v_mov_b32 v{VBR+i}, v{VBR0+i}")
    PF = opt.get("pf1", 4)
    if PF:
        if t == 8:
            o(f"s_cmp_ge_u32 s{sW}, 2\ns_cselect_b32 s{SPF}, s{SB1}, s{SB0}\ns_cselect_b32 s{SPF+1}, s{SB1+1}, s{SB0+1}\ns_cselect_b32 s{SPF+2}, s{SB1+2}, s{SB0+2}\ns_cselect_b32 s71, 2048, 0")
            o(f"s_mul_i32 s72, s2, {14*128}\ns_and_b32 s73, s{sW}, 1\ns_mul_i32 s73, s73, {7*128}\ns_add_u32 s72, s72, s73\ns_add_u32 s72, s72, s71\nv_lshlrev_b32 v0, 7, v2\nv_add_u32 v0, s72, v0\ns_mov_b32 s{sPFS}, {64*STR}\ns_mov_b64 s[{sPFX}:{sPFX+1}], 0x7f")
        else:
            o(f"s_mov_b32 s{SPF}, s{SA}\ns_mov_b32 s{SPF+1}, s{SA+1}\ns_mov_b32 s{SPF+2}, s{SA+2}")
            o(f"s_lshl_b32 s72, s2, 3\ns_sub_u32 s73, s{sW}, 4\ns_lshl_b32 s73, s73, 1\ns_add_u32 s72, s72, s73\nv_add_u32 v0, s72, v2\nv_lshlrev_b32 v0, 11, v0\ns_mov_b32 s{sPFS}, 128\ns_mov_b64 s[{sPFX}:{sPFX+1}], 3")
        o(f"s_mov_b32 s{SPF+3}, 0x20000\ns_mul_i32 s{sPFO}, s{sPFS}, {PF}")

def pf_init(o, opt):
    PF = opt.get("pf1", 4)
    if PF > 2 and opt.get("pfi", 0):
        o(f"s_lshl_b32 s71, s{sPFS}, 1\ns_mov_b64 exec, s[{sPFX}:{sPFX+1}]")
        for i in range(2, PF): o(f"buffer_load_dword v1, v0, s[{SPF}:{SPF+3}], s71 offen\ns_add_u32 s71, s71, s{sPFS}")
        o("s_mov_b64 exec, -1")

def pt(o, opt, name):
    pts = opt.get("pst", ["bar", "loopend"])
    if name in pts: stamp(o, opt, 1 + pts.index(name))

def gen_p1(opt):
    o = Asm()
    name = "p1_kernel"
    o(f".globl {name}\n.p2align 8\n.type {name},@function\n{name}:")
    o("s_cmp_ge_u32 s2, 256\ns_cbranch_scc1 L_p1_end")
    stamp(o, opt, 0)
    o("s_load_dwordx2 s[4:5], s[0:1], 0\ns_load_dwordx4 s[12:15], s[0:1], 48\ns_load_dwordx4 s[20:23], s[0:1], 64\ns_load_dwordx2 s[18:19], s[0:1], 96")
    o(f"v_lshrrev_b32 v1, 6, v0\nv_and_b32 v2, 63, v0\ns_nop 0\nv_readfirstlane_b32 s{sW}, v1")
    o("s_and_b32 s60, s2, 7\ns_lshr_b32 s61, s2, 3")
    o(f"s_and_b32 s62, s60, 6\ns_and_b32 s63, s61, 1\ns_add_u32 s{sMB_}, s62, s63\ns_and_b32 s62, s60, 1\ns_lshl_b32 s62, s62, 4\ns_lshr_b32 s63, s61, 1\ns_add_u32 s{sNB}, s62, s63")
    o(f"v_lshlrev_b32 v3, 4, v2\ns_lshl_b32 s66, s{sW}, 12\ns_add_u32 s{sWB}, s66, 65536\ns_mov_b32 s{sMA}, s66\ns_mov_b32 s{sC}, 65536\ns_mov_b32 s{sN}, 0")
    o(f"s_lshr_b32 s63, s2, 6\ns_lshl_b32 s63, s63, 2\ns_and_b32 s62, s{sW}, 1\ns_lshl_b32 s62, s62, 1\ns_add_u32 s63, s63, s62\ns_and_b32 s62, s{sW}, 2\ns_lshl_b32 s62, s62, 3\ns_add_u32 s62, s62, s63\ns_lshl_b32 s62, s62, 6\ns_and_b32 s63, s2, 63\ns_add_u32 s{sROW}, s62, s63")
    o(f"s_lshl_b32 s63, s{sROW}, 11\ns_add_u32 s64, s63, {64*2048}")
    o(f"s_lshl_b32 s68, s{sW}, 11\ns_add_u32 s68, s68, 131072\ns_cmp_lt_u32 s{sW}, 4\ns_cbranch_scc1 L_p1_fft")
    dma_addrs(o)
    for j in range(4): o(f"v_subrev_u32 v{16+j}, {128*2048}, v{VAD+j}")
    for j in range(2): o(f"v_subrev_u32 v{20+j}, {32*STR}, v{VBD+j}")
    o(f"s_mov_b32 s{sKA}, 0\ns_mov_b32 s{sKB}, 0\ns_waitcnt lgkmcnt(0)")
    def srds():
        srd(o, SA, 4, 5, S*D*2); srd(o, SB0, 12, 13, D*F*2)
        o("s_sub_u32 s14, s14, 2048\ns_subb_u32 s15, s15, 0")
        srd(o, SB1, 14, 15, D*F*2 + 2048); srd(o, SWS, 18, 19, WS_SIZE)
    srds()
    srd(o, SM1, 22, 23, D*2)
    XG = [64, 72]
    for b in range(2): o(f"buffer_load_dwordx4 {vr(XG[b],4)}, v3, s[{SA}:{SA+3}], s{63+b} offen\nbuffer_load_dwordx4 {vr(XG[b]+4,4)}, v3, s[{SA}:{SA+3}], s{63+b} offen offset:1024")
    o(f"buffer_load_dwordx4 v[80:83], v3, s[{SM1}:{SM1+3}], 0 offen\nbuffer_load_dwordx4 v[84:87], v3, s[{SM1}:{SM1+3}], 0 offen offset:1024")
    loop_addrs(o, opt, 24)
    pf_init(o, opt)
    npf = max(0, opt.get("pf1", 4) - 2) if opt.get("pfi", 0) else 0
    for st in range(2):
        if st == 1:
            o(f"s_waitcnt vmcnt({16+npf})\nv_mov_b32 v14, 0\nv_mov_b32 v15, 0\ns_mov_b32 s72, 0x3f803f80")
            for i in range(8):
                g = 80+i; t = 24 + 4*(i & 1)
                o(f"v_and_b32 v8, 0xffff, v{g}\nv_and_b32 v9, 0xffff0000, v{g}")
                for b in range(2): o(f"v_dot2_f32_bf16 v{t+2*b}, v{XG[b]+i}, v8, 0\nv_dot2_f32_bf16 v{t+2*b+1}, v{XG[b]+i}, v9, 0")
                if i: o(f"v_dot2_f32_bf16 v14, v{XG[0]+i-1}, s72, v14\nv_dot2_f32_bf16 v15, v{XG[1]+i-1}, s72, v15")
                o(f"s_nop {0 if i else 2}\nv_cvt_pk_bf16_f32 v{XG[0]+i}, v{t}, v{t+1}\nv_cvt_pk_bf16_f32 v{XG[1]+i}, v{t+2}, v{t+3}")
            o(f"v_dot2_f32_bf16 v14, v{XG[0]+7}, s72, v14\nv_dot2_f32_bf16 v15, v{XG[1]+7}, s72, v15")
        o(f"s_add_u32 m0, s{sMA}, {st*32768 - 16384}\ns_nop 0" if st else f"s_sub_u32 m0, s{sMA}, 16384\ns_nop 0")
        for j in range(4): o(dmaA(j).replace(f"v{VAD+j},", f"v{16+j},"))
        o("s_add_u32 m0, m0, 16384\ns_nop 0")
        for j in range(4): o(dmaA(j))
        o(f"s_add_u32 m0, s{sWB}, {st*32768 - 16384}\ns_nop 0" if st else f"s_sub_u32 m0, s{sWB}, 16384\ns_nop 0")
        for j in range(4): o(dmaB(j).replace(f"v{VBD+(j&1)},", f"v{20+(j&1)},"))
        o("s_add_u32 m0, m0, 16384\ns_nop 0")
        for j in range(4): o(dmaB(j))
        o(f"s_mov_b32 s{sKA}, 128\ns_add_u32 s{sKB}, s{sKB}, {64*STR}")
    o("s_waitcnt vmcnt(16)\ns_branch L_p1_join")
    o("L_p1_fft:")
    o(f"s_mov_b32 m0, s68\ns_mov_b32 s{sKA}, 128\ns_mov_b32 s{sKB}, {128*STR}")
    o("s_waitcnt lgkmcnt(0)")
    pt(o, opt, "sload")
    srd(o, SA, 4, 5, S*D*2)
    o(f"buffer_load_dwordx4 v3, s[{SA}:{SA+3}], s63 offen lds\nbuffer_load_dwordx4 v3, s[{SA}:{SA+3}], s63 offen offset:1024 lds\ns_add_u32 m0, m0, 8192")
    o("s_nop 0")
    o(f"buffer_load_dwordx4 v3, s[{SA}:{SA+3}], s64 offen lds\nbuffer_load_dwordx4 v3, s[{SA}:{SA+3}], s64 offen offset:1024 lds")
    srds()
    dma_addrs(o)
    loop_addrs(o, opt, 8)
    pf_init(o, opt)
    C1, S1, N1, T0, TW = 16, 24, 32, 40, 128
    U = [160, 192]; V = [40, 88]; XF = [56, 104]; XR = [64, 72]; ZR = [224, 160]
    o("v_and_b32 v4, 31, v2\nv_lshrrev_b32 v5, 5, v2\nv_cvt_f32_u32 v8, v4\nv_cvt_f32_u32 v9, v5\nv_and_b32 v10, 1, v2\nv_mul_u32_u24 v10, 0x8000, v10\nv_mul_u32_u24 v10, 0x10001, v10\nv_mul_f32 v9, v8, v9")
    o(f"v_mul_f32 v11, {hx(f2u(4/32.))}, v9")
    for j in range(8):
        t = 12 + (j & 3)
        o(f"v_fmamk_f32 v{t}, v8, {hx(f2u((8*(j>>2)+(j&3))/32.))}, v11\nv_fract_f32 v{t}, v{t}\nv_cos_f32 v{T0+j}, v{t}\nv_sin_f32 v{T0+8+j}, v{t}")
    o(f"v_mul_f32 v11, {hx(f2u(4/1024.))}, v9")
    for i in range(4): o(f"v_cvt_pk_bf16_f32 v{C1+i}, v{T0+2*i}, v{T0+2*i+1}\nv_cvt_pk_bf16_f32 v{S1+i}, v{T0+8+2*i}, v{T0+8+2*i+1}")
    for i in range(4): o(f"v_xor_b32 v{C1+4+i}, v{C1+i}, v10\nv_xor_b32 v{S1+4+i}, v{S1+i}, v10")
    for i in range(8): o(f"v_xor_b32 v{N1+i}, 0x80008000, v{S1+i}")
    o("v_lshlrev_b32 v6, 8, v5\nv_lshrrev_b32 v7, 2, v2\nv_and_b32 v7, 3, v7\nv_lshlrev_b32 v7, 6, v7\nv_add_u32 v6, v6, v7\nv_and_b32 v7, 16, v2\nv_lshlrev_b32 v7, 1, v7\nv_add_u32 v6, v6, v7\nv_and_b32 v7, 3, v2\nv_lshlrev_b32 v7, 3, v7\nv_add_u32 v6, v6, v7\nv_add_u32 v6, s68, v6")
    for r in range(16):
        t = 12 + (r & 3)
        o(f"v_fmamk_f32 v{t}, v8, {hx(f2u((8*(r>>2)+(r&3))/1024.))}, v11\nv_cos_f32 v{TW+r}, v{t}\nv_sin_f32 v{TW+16+r}, v{t}")
    o(f"v_lshlrev_b32 v12, 4, v4\nv_lshlrev_b32 v13, 11, v5\nv_add_u32 v12, v12, v13\ns_lshl_b32 s62, s{sW}, 2\ns_add_u32 s62, s62, {131072+16384}\nv_add_u32 v12, s62, v12")
    pt(o, opt, "const")
    o(f"s_waitcnt vmcnt({npf})")
    pt(o, opt, "xrow")
    for b in range(2):
        for kap in range(2):
            for rd in range(2): o(f"ds_read_b64_tr_b16 {vr(XF[b]+4*kap+2*rd,2)}, v6 offset:{b*8192+kap*1024+rd*512}")
    mf = "v_mfma_f32_32x32x16_bf16"
    for b in range(2):
        o(f"s_waitcnt lgkmcnt({4-4*b})")
        o(f"{mf} {vr(U[b],16)}, {vr(XF[b],4)}, {vr(C1,4)}, 0\n{mf} {vr(U[b]+16,16)}, {vr(XF[b],4)}, {vr(N1,4)}, 0")
        o(f"{mf} {vr(U[b],16)}, {vr(XF[b]+4,4)}, {vr(C1+4,4)}, {vr(U[b],16)}\n{mf} {vr(U[b]+16,16)}, {vr(XF[b]+4,4)}, {vr(N1+4,4)}, {vr(U[b]+16,16)}")
    o("s_nop 7")
    def twid(b):
        for i in range(0, 16, 2):
            t = 56 + 4*((i >> 1) & 1)
            ur, ui, c, s_ = vr(U[b]+i,2), vr(U[b]+16+i,2), vr(TW+i,2), vr(TW+16+i,2)
            o(f"v_pk_mul_f32 {vr(t,2)}, {ur}, {c}\nv_pk_mul_f32 {vr(t+2,2)}, {ui}, {c}")
            o(f"v_pk_fma_f32 {vr(t,2)}, {ui}, {s_}, {vr(t,2)}\nv_pk_fma_f32 {vr(t+2,2)}, {ur}, {s_}, {vr(t+2,2)} neg_lo:[1,0,0] neg_hi:[1,0,0]")
            o(f"v_cvt_pk_bf16_f32 v{V[b]+i//2}, v{t}, v{t+1}\nv_cvt_pk_bf16_f32 v{V[b]+8+i//2}, v{t+2}, v{t+3}")
        o("s_nop 1")
        zr, zi = vr(ZR[b], 16), vr(ZR[b]+16, 16); re, im = V[b], V[b]+8
        o(f"{mf} {zr}, {vr(C1,4)}, {vr(re,4)}, 0\n{mf} {zi}, {vr(C1,4)}, {vr(im,4)}, 0")
        o(f"{mf} {zr}, {vr(S1,4)}, {vr(im,4)}, {zr}\n{mf} {zi}, {vr(N1,4)}, {vr(re,4)}, {zi}")
        o(f"{mf} {zr}, {vr(C1+4,4)}, {vr(re+4,4)}, {zr}\n{mf} {zi}, {vr(C1+4,4)}, {vr(im+4,4)}, {zi}")
        o(f"{mf} {zr}, {vr(S1+4,4)}, {vr(im+4,4)}, {zr}\n{mf} {zi}, {vr(N1+4,4)}, {vr(re+4,4)}, {zi}")
    twid(0); twid(1)
    pt(o, opt, "zmfma")
    o("s_nop 11")
    for n in range(16):
        part, r = n >> 3, n & 7
        o(f"v_cvt_pk_bf16_f32 v{200+n}, v{ZR[0]+16*part+r}, v{ZR[1]+16*part+r}\nds_write_b32 v12, v{200+n} offset:{(8*(r >> 2) + (r & 3))*512 + part*8192}")
    o(f"v_cvt_pk_bf16_f32 v12, v{ZR[0]+8}, v{ZR[1]+8}")
    o("L_p1_join:\ns_add_u32 s62, s68, 16384\nv_add_u32 v13, s62, v3")
    pt(o, opt, "prebar")
    o("s_waitcnt lgkmcnt(0)\ns_barrier")
    pt(o, opt, "bar")
    o("ds_read_b128 v[4:7], v13\nds_read_b128 v[8:11], v13 offset:1024")
    o(f"s_cmp_ge_u32 s{sW}, 4\ns_cbranch_scc1 L_p1_g1")
    for r in reads(0, 0, 4): o(r)
    o("s_waitcnt lgkmcnt(15)\ns_waitcnt lgkmcnt(0)\ns_barrier")
    mainloop(o, 4, opt)
    pt(o, opt, "loopend")
    epilogue(o, 4, opt)
    stamp_out(o, opt, 0, sW, SWS, 4)
    o("s_endpgm\nL_p1_g1:")
    for r in reads(0, 0, 3): o(r)
    o("s_waitcnt lgkmcnt(0)\ns_barrier")
    mainloop(o, 3, opt)
    pt(o, opt, "loopend")
    epilogue(o, 3, opt)
    o(f"s_lshl_b32 s60, s2, 3\ns_add_u32 s60, s60, s{sW}\ns_cmp_lg_u32 s60, {255*8+7}\ns_cbranch_scc1 L_p1_notag\ns_mov_b32 s60, {hx(WS_TAG)}\nv_mov_b32 v4, 0\ns_mov_b64 exec, 1")
    o(f"buffer_load_dword v5, v4, s[{SWS}:{SWS+3}], s60 offen sc1\ns_waitcnt vmcnt(0)\nv_add_u32 v5, 1, v5\nbuffer_store_dword v5, v4, s[{SWS}:{SWS+3}], s60 offen sc1\ns_mov_b64 exec, -1\nL_p1_notag:")
    stamp_out(o, opt, 0, sW, SWS, 4)
    o("L_p1_end:\ns_endpgm")
    return o.text(), kd(name, 256)
```

```python
from common import *
import math
NST = 5
NK = 28
SH, SWD, SWS, SOUT, SDBG = 24, 28, 32, 36, 40
sW, sPB, sET, sKH_, sN, sST, sK1, sK2, sLB = 48, 49, 50, 51, 52, 53, 54, 55, 56
ACC = 192
SETS = [128, 160]
VHR, VWR, VHB, VWB = 116, 117, 121, 122

def c_reads(st, kap):
    b = SETS[st]
    def w(u, rd): return f"ds_read_b64_tr_b16 {vr(b+16+4*u+2*rd,2)}, v{VWR+u} offset:{kap*8192+rd*4096}"
    def h(p, rd): return f"ds_read_b64 {vr(b+4*p+2*rd,2)}, v{VHR} offset:{(2*kap+rd)*4096+p*512}"
    r = []
    for i in range(4): r += [w(i,0), w(i,1), h(i,0), h(i,1)]
    return r
def c_mfmas(st, zero=False):
    b = SETS[st]; r = []
    for (p, u) in [(0,0),(0,1),(1,1),(1,0),(2,0),(2,1),(2,2),(1,2),(0,2),(0,3),(1,3),(2,3),(3,3),(3,2),(3,1),(3,0)]:
        A = vr(ACC + (p*4+u)*4, 4)
        r.append(f"v_mfma_f32_16x16x32_bf16 {A}, {vr(b+16+4*u,4)}, {vr(b+4*p,4)}, {'0' if zero else A}")
    return r

ZFIRST = True
def fft(o):
    ZA, ZB, C1, S1, N1 = 8, 24, 40, 48, 56
    U, TW, C3 = 64, 128, 192
    ZP = 16512
    o(f"v_and_b32 v3, 31, v2\nv_lshrrev_b32 v4, 5, v2\nv_lshlrev_b32 v5, 2, v3\nv_add_u32 v5, v5, v4\nv_mul_u32_u24 v214, {ZP}, v5\nv_add_u32 v215, {2*ZP}, v214\nv_add_u32 v216, {128*ZP}, v214\nv_add_u32 v217, {130*ZP}, v214")
    o(f"s_lshl_b32 s61, s60, 4\ns_cmp_eq_u32 s60, 512\ns_cselect_b32 s61, 16384, s61\ns_add_u32 s61, s61, {hx(WS_Z)}\ns_add_u32 s62, s61, 8192")
    for part in range(2):
        for tile in range(2):
            for kap in range(2):
                o(f"buffer_load_dwordx4 {vr((ZA,ZB)[part]+(tile*2+kap)*4,4)}, v{214+tile*2+kap}, s[{SWS}:{SWS+3}], s{61+part} offen")
    if ZFIRST: o("s_barrier")
    o("v_cvt_f32_u32 v210, v3\nv_cvt_f32_u32 v211, v4\nv_and_b32 v212, 1, v2\nv_mul_u32_u24 v212, 0x8000, v212\nv_mul_u32_u24 v212, 0x10001, v212")
    o("v_mul_f32 v211, v210, v211")
    def base(scale): o(f"v_mul_f32 v213, {hx(f2u(4.0*scale))}, v211")
    def cs(dc, ds, cst, scale, tmp):
        o(f"v_fmamk_f32 v{tmp}, v210, {hx(f2u(cst*scale))}, v213\nv_fract_f32 v{tmp}, v{tmp}")
        o(f"v_cos_f32 v{dc}, v{tmp}\nv_sin_f32 v{ds}, v{tmp}")
    def slot(j): return 8*(j >> 2) + (j & 3)
    base(1/32.)
    for j in range(8): cs(U+j, U+8+j, slot(j), 1/32., 214 + (j & 3))
    o("s_nop 0")
    for kap in range(2):
        for i in range(2):
            o(f"v_cvt_pk_bf16_f32 v{C1+4*kap+i}, v{U+4*kap+2*i}, v{U+4*kap+2*i+1}\nv_cvt_pk_bf16_f32 v{S1+4*kap+i}, v{U+8+4*kap+2*i}, v{U+8+4*kap+2*i+1}")
        for i in range(2):
            o(f"v_xor_b32 v{C1+4*kap+2+i}, v{C1+4*kap+i}, v212\nv_xor_b32 v{S1+4*kap+2+i}, v{S1+4*kap+i}, v212")
    for i in range(8): o(f"v_xor_b32 v{N1+i}, 0x80008000, v{S1+i}")
    base(1/64.)
    for kp in range(2):
        for j in range(8): cs(U+j, U+8+j, 16*kp + slot(j), 1/64., 214 + (j & 3))
        o("s_nop 0")
        for i in range(4):
            o(f"v_cvt_pk_bf16_f32 v{C3+4*kp+i}, v{U+2*i}, v{U+2*i+1}\nv_cvt_pk_bf16_f32 v{C3+8+4*kp+i}, v{U+8+2*i}, v{U+8+2*i+1}")
    base(1/2048.)
    for tile in range(2):
        for r in range(16):
            c = 32*tile + 8*(r >> 2) + (r & 3); t = 214 + (r & 3)
            o(f"v_fmamk_f32 v{t}, v210, {hx(f2u(c/2048.))}, v213\nv_cos_f32 v{TW+tile*16+r}, v{t}\nv_sin_f32 v{TW+32+tile*16+r}, v{t}")
    o("s_waitcnt vmcnt(0)")
    o("s_cmp_lg_u32 s60, 512\ns_cbranch_scc1 L_fft_nz")
    for i in range(16): o(f"v_mov_b32 v{ZB+i}, 0")
    o("L_fft_nz:\ns_nop 1")
    mf = "v_mfma_f32_32x32x16_bf16"
    for kap in range(2):
        for tile in range(2):
            za = vr(ZA+(tile*2+kap)*4, 4); zb = vr(ZB+(tile*2+kap)*4, 4)
            re = vr(U+tile*16, 16); im = vr(U+32+tile*16, 16)
            c0r = re if kap else "0"; c0i = im if kap else "0"
            o(f"{mf} {re}, {za}, {vr(C1+4*kap,4)}, {c0r}\n{mf} {im}, {zb}, {vr(C1+4*kap,4)}, {c0i}")
            o(f"{mf} {re}, {zb}, {vr(S1+4*kap,4)}, {re}\n{mf} {im}, {za}, {vr(N1+4*kap,4)}, {im}")
    C3X = 220
    for part in range(2):
        for kp in range(2):
            for i in range(4): o(f"v_xor_b32 v{C3X+8*part+4*kp+i}, v{C3+8*part+4*kp+i}, v212")
    def c3(part, kp): return (C3 if kp < 2 else C3X) + 8*part + 4*(kp & 1)
    for i in range(0, 32, 2):
        t = 236 + 4*((i >> 1) & 1)
        ur, ui, c, s_ = vr(U+i,2), vr(U+32+i,2), vr(TW+i,2), vr(TW+32+i,2)
        o(f"v_pk_mul_f32 {vr(t,2)}, {ur}, {c}\nv_pk_mul_f32 {vr(t+2,2)}, {ui}, {c}")
        o(f"v_pk_fma_f32 {vr(t,2)}, {ui}, {s_}, {vr(t,2)}\nv_pk_fma_f32 {vr(t+2,2)}, {ur}, {s_}, {vr(t+2,2)} neg_lo:[1,0,0] neg_hi:[1,0,0]")
        o(f"v_cvt_pk_bf16_f32 v{8+i//2}, v{t}, v{t+1}\nv_cvt_pk_bf16_f32 v{24+i//2}, v{t+2}, v{t+3}")
    o("s_nop 1")
    first = True
    for kp in range(4):
        for part in range(2):
            Y = vr(U, 16)
            o(f"{mf} {Y}, {vr(c3(part,kp),4)}, {vr(8+16*part+4*kp,4)}, {'0' if first else Y}")
            first = False
            for i in range(4): o(f"v_xor_b32 v{TW+(kp*2+part)*4+i}, 0x80000000, v{c3(part,kp)+i}")
    o("s_nop 1")
    first = True
    for kp in range(4):
        for part in range(2):
            Y = vr(U+16, 16)
            o(f"{mf} {Y}, {vr(TW+(kp*2+part)*4,4)}, {vr(8+16*part+4*kp,4)}, {'0' if first else Y}")
            first = False
    o("v_lshlrev_b32 v5, 2, v3\nv_lshlrev_b32 v6, 9, v4\nv_add_u32 v5, v5, v6")
    o(f"s_lshl_b32 s61, s60, 13\ns_add_u32 s61, s61, {hx(WS_YT)}\ns_add_u32 s62, s61, 4096")
    for T in range(2):
        if T: o("s_nop 7")
        for r in range(16):
            o(f"buffer_store_dword v{U+16*T+r}, v5, s[{SWS}:{SWS+3}], s{61+T} offen offset:{(8*(r>>2)+(r&3))*128} sc1")

def gen_p2(opt):
    global ZFIRST
    ZFIRST = opt.get("zfirst", 0)
    o = Asm()
    name = "p2_kernel"
    o(f".globl {name}\n.p2align 8\n.type {name},@function\n{name}:")
    o("s_cmp_ge_u32 s2, 256\ns_cbranch_scc1 L_p2_end")
    stamp(o, opt, 0)
    if opt.get("stamp"): o("s_mov_b64 s[84:85], 0\ns_mov_b64 s[86:87], 0\ns_mov_b64 s[88:89], 0\ns_mov_b64 s[90:91], 0\ns_mov_b64 s[92:93], 0\ns_mov_b64 s[94:95], 0")
    o("s_load_dwordx2 s[4:5], s[0:1], 64\ns_load_dwordx4 s[8:11], s[0:1], 80\ns_load_dwordx2 s[12:13], s[0:1], 96")
    o(f"v_lshrrev_b32 v1, 6, v0\nv_and_b32 v2, 63, v0\ns_nop 0\nv_readfirstlane_b32 s{sW}, v1")
    o(f"s_and_b32 s60, s2, 7\ns_lshr_b32 s61, s2, 3\ns_lshr_b32 s62, s60, 1\ns_lshl_b32 s62, s62, 2\ns_lshr_b32 s63, s61, 3\ns_add_u32 s{sPB}, s62, s63")
    o(f"s_add_u32 s61, s61, {opt.get('etrot',0)}\ns_and_b32 s{sET}, s61, 7\ns_and_b32 s{sKH_}, s60, 1")
    o(f"s_cmp_lt_u32 s{sW}, 4\ns_cbranch_scc1 L_p2_cons")
    VH, VWD = 24, 26
    o(f"s_sub_u32 s60, s{sW}, 4\ns_mul_i32 s61, s{sKH_}, {NK*H_SS}\ns_mul_i32 s62, s{sPB}, {H_PS}\ns_add_u32 s61, s61, s62\ns_lshl_b32 s{sLB}, s60, 12\ns_add_u32 s61, s61, s{sLB}")
    o(f"v_lshlrev_b32 v3, 4, v2\nv_add_u32 v{VH}, s61, v3")
    pairs = opt.get("pairs", [[2*i, 2*i+1] for i in range(8)])
    T0 = sum(pr[0] << (4*i) for i, pr in enumerate(pairs)); T1 = sum(pr[1] << (4*i) for i, pr in enumerate(pairs))
    o(f"s_lshl_b32 s62, s{sET}, 2\ns_lshr_b32 s57, {hx(T0)}, s62\ns_and_b32 s57, s57, 15\ns_lshr_b32 s58, {hx(T1)}, s62\ns_and_b32 s58, s58, 15")
    o(f"v_lshrrev_b32 v4, 4, v2\nv_lshlrev_b32 v5, 11, v4\nv_lshlrev_b32 v4, 1, v4\nv_and_b32 v6, 15, v2\nv_xor_b32 v4, v4, v6")
    o(f"s_mul_i32 s61, s{sKH_}, {1792*2048}\ns_lshl_b32 s62, s60, 15\ns_add_u32 s61, s61, s62\nv_add_u32 v5, s61, v5")
    o(f"v_and_b32 v6, 7, v4\nv_lshlrev_b32 v6, 4, v6\nv_add_u32 v5, v5, v6\ns_lshl_b32 s61, s57, 7\ns_lshl_b32 s62, s58, 7\nv_mov_b32 v6, s61\nv_mov_b32 v7, s62\nv_cmp_gt_u32 vcc, 8, v4\ns_nop 1")
    o(f"v_cndmask_b32 v8, v7, v6, vcc\nv_cndmask_b32 v9, v6, v7, vcc\nv_add_u32 v{VWD}, v5, v8\nv_add_u32 v{VWD+1}, v5, v9\nv_add_u32 v{VWD+1}, {8192-1024}, v{VWD+1}")
    o(f"v_add_u32 v{VWD+2}, {2*(8192-1024)}, v{VWD}\nv_add_u32 v{VWD+3}, {2*(8192-1024)}, v{VWD+1}")
    o(f"s_mov_b32 s{sK1}, 0\ns_mov_b32 s{sK2}, 0\ns_mov_b32 s{sST}, 0\ns_mov_b32 s{sN}, 0")
    o("s_waitcnt lgkmcnt(0)")
    srd(o, SWD, 4, 5, F*D*2)
    srd(o, SWS, 12, 13, WS_SIZE)
    def issue():
        if opt.get("noload") == 1:
            o(f"s_mov_b32 s{SWS+2}, 0\ns_mov_b32 s{SWD+2}, 0")
        if opt.get("noload") == 2:
            o(f"s_mov_b32 s{sK1}, 0\ns_mov_b32 s{sK2}, 0")
        o(f"s_add_u32 m0, s{sST}, s{sLB}\ns_nop 0")
        for j in range(4): o(f"buffer_load_dwordx4 v{VH}, s[{SWS}:{SWS+3}], s{sK1} offen offset:{j*1024} lds")
        o(f"s_add_u32 m0, m0, 16384\ns_nop 0")
        for j in range(4): o(f"buffer_load_dwordx4 v{VWD+j}, s[{SWD}:{SWD+3}], s{sK2} offen offset:{j*1024} lds")
        o(f"s_add_u32 s{sK1}, s{sK1}, {H_SS}\ns_add_u32 s{sK2}, s{sK2}, 131072")
        o(f"s_add_u32 s{sST}, s{sST}, 32768\ns_cmp_ge_u32 s{sST}, {NST*32768}\ns_cselect_b32 s{sST}, 0, s{sST}")
    if ZFIRST: o("s_barrier")
    o("L_p2_lpro:"); issue()
    o(f"s_add_u32 s{sN}, s{sN}, 1\ns_cmp_lt_u32 s{sN}, {NST}\ns_cbranch_scc1 L_p2_lpro")
    srd(o, SOUT, 8, 9, S*D*2)
    srd(o, SDBG, 10, 11, 256)
    o(f"v_mov_b32 v9, 0\ns_mov_b32 s{sN}, 1\ns_waitcnt vmcnt(32)\ns_barrier\nL_p2_lloop:\ns_waitcnt vmcnt(24)\ns_barrier")
    issue()
    o(f"s_add_u32 s{sN}, s{sN}, 1\ns_cmp_lt_u32 s{sN}, 21\ns_cbranch_scc1 L_p2_lloop")
    if opt.get("noload"): o(f"s_mov_b32 s{SWS+2}, {hx(WS_SIZE)}")
    o(f"buffer_load_dword v10, v9, s[{SDBG}:{SDBG+3}], 0 offen sc1")
    o(f"s_lshl_b32 s63, s{sPB}, 7\ns_lshl_b32 s64, s60, 5\ns_add_u32 s63, s63, s64\nv_and_b32 v4, 15, v2\nv_add_u32 v4, s63, v4\nv_lshrrev_b32 v5, 4, v2")
    o(f"s_cmp_eq_u32 s{sKH_}, 0\ns_cselect_b32 s64, s57, s58\ns_lshl_b32 s64, s64, 6")
    o("v_lshlrev_b32 v6, 2, v4\nv_lshlrev_b32 v7, 15, v5\ns_cmp_ge_u32 s64, 512\ns_cbranch_scc1 L_p2_mir")
    o(f"v_add_u32 v12, v6, v7\nv_add_u32 v13, 64, v12\ns_lshl_b32 s66, s64, 13\ns_mov_b32 s67, 8192\ns_branch L_p2_mird\nL_p2_mir:")
    o(f"v_sub_u32 v12, 0x800, v4\nv_subrev_u32 v13, 16, v12\nv_and_b32 v12, 0x7ff, v12\nv_lshlrev_b32 v12, 2, v12\nv_lshlrev_b32 v13, 2, v13\nv_sub_u32 v7, 0x18000, v7\nv_add_u32 v12, v12, v7\nv_add_u32 v13, v13, v7")
    o(f"s_sub_u32 s66, 1012, s64\ns_lshl_b32 s66, s66, 13\ns_mov_b32 s67, -8192\nL_p2_mird:\ns_add_u32 s66, s66, {hx(WS_YT)}")
    for m in range(21, 24):
        o("s_waitcnt vmcnt(25)\ns_barrier")
        issue()
        if opt.get("noload"): o(f"s_mov_b32 s{SWS+2}, {hx(WS_SIZE)}")
    o("s_waitcnt vmcnt(24)\ns_barrier")
    o(f"L_p2_poll1:\nv_readfirstlane_b32 s68, v10\ns_nop 3\ns_cmp_ge_u32 s68, 256\ns_cbranch_scc1 L_p2_poll1d\ns_sleep 1\nbuffer_load_dword v10, v9, s[{SDBG}:{SDBG+3}], 0 offen sc1\ns_waitcnt vmcnt(0)\ns_branch L_p2_poll1\nL_p2_poll1d:")
    o(f"s_mov_b32 s68, {hx(WS_G)}\nbuffer_load_dword v14, v6, s[{SWS}:{SWS+3}], s68 offen\nbuffer_load_dword v15, v6, s[{SWS}:{SWS+3}], s68 offen offset:64")
    o(f"s_mov_b32 s68, {hx(WS_TAG)}\nbuffer_load_dword v18, v9, s[{SWS}:{SWS+3}], s68 offen")
    Y0 = 32
    for u in range(4):
        for r in range(4):
            o(f"s_mul_i32 s68, s67, {16*u+r}\ns_add_u32 s68, s68, s66")
            for a in range(2): o(f"buffer_load_dword v{Y0+(a*4+u)*4+r}, v{12+a}, s[{SWS}:{SWS+3}], s68 offen sc1")
    o("s_waitcnt vmcnt(51)\ns_barrier\ns_waitcnt vmcnt(43)\ns_barrier\ns_waitcnt vmcnt(35)\ns_barrier")
    o("v_lshlrev_b32 v6, 11, v4\nv_and_b32 v7, 16, v2\nv_lshlrev_b32 v7, 1, v7\nv_add_u32 v6, v6, v7\nv_lshrrev_b32 v7, 5, v2\nv_lshlrev_b32 v7, 4, v7\nv_add_u32 v6, v6, v7\ns_lshl_b32 s64, s64, 1\ns_add_u32 s65, s64, 32768")
    o(f"s_lshl_b32 s62, s60, 13\nv_lshlrev_b32 v3, 4, v2\nv_add_u32 v3, s62, v3\nv_add_u32 v8, 4096, v3")
    o("s_waitcnt vmcnt(0)")
    for a in range(2):
        o(f"v_sub_f32 v{16+a}, 1.0, v{14+a}\nv_cvt_pk_bf16_f32 v{16+a}, v{16+a}, v{16+a}\nv_lshlrev_b32 v{16+a}, 16, v{16+a}")
        for i in range(16): o(f"v_mul_f32 v{Y0+16*a+i}, v{14+a}, v{Y0+16*a+i}")
    O0, X0 = 64, 96
    o(f"s_mul_i32 s66, s2, {XB_S}\ns_add_u32 s66, s66, {hx(WS_XB)}\ns_mov_b32 s67, 0xfffff000")
    o("s_barrier")
    stamp(o, opt, 3)
    for i in range(8): o(f"ds_read_b128 {vr(O0+4*i,4)}, v3 offset:{i*1024}")
    o("L_p2_poll2:")
    for i in range(8): o(f"buffer_load_dwordx4 {vr(X0+4*i,4)}, v{3 if i < 4 else 8}, s[{SWS}:{SWS+3}], s66 offen offset:{(i&3)*1024} sc1")
    o("v_mov_b32 v19, 0")
    for i in range(8):
        o(f"s_waitcnt vmcnt({7-i})")
        for j in range(4): o(f"v_bitop3_b32 v19, v19, v{X0+4*i+j}, v18 bitop3:0xf6")
    o("v_and_b32 v19, 0xfff, v19\nv_cmp_ne_u32 vcc, 0, v19\ns_cbranch_vccnz L_p2_poll2")
    o("s_waitcnt lgkmcnt(0)")
    for i in range(32): o(f"v_and_b32 v{X0+i}, s67, v{X0+i}\nv_add_f32 v{X0+i}, v{X0+i}, v{O0+i}")
    for a in range(2):
        for i in range(16): o(f"v_fmac_f32 v{Y0+16*a+i}, v{16+a}, v{X0+16*a+i}")
        P = 128 + 8*a
        for u in range(4):
            d = P + 4*(u >> 1) + 2*(u & 1)
            o(f"v_cvt_pk_bf16_f32 v{d}, v{Y0+16*a+4*u}, v{Y0+16*a+4*u+1}\nv_cvt_pk_bf16_f32 v{d+1}, v{Y0+16*a+4*u+2}, v{Y0+16*a+4*u+3}")
        o(f"s_nop 1\nv_permlane16_swap_b32 v{P}, v{P+2}\nv_permlane16_swap_b32 v{P+1}, v{P+3}\nv_permlane16_swap_b32 v{P+4}, v{P+6}\nv_permlane16_swap_b32 v{P+5}, v{P+7}")
        o(f"buffer_store_dwordx4 {vr(P,4)}, v6, s[{SOUT}:{SOUT+3}], s{64+a} offen\nbuffer_store_dwordx4 {vr(P+4,4)}, v6, s[{SOUT}:{SOUT+3}], s{64+a} offen offset:64")
    stamp_out(o, opt, 1, sW, SWS, 5)
    if opt.get("dbgout"):
        o(f"s_lshl_b32 s60, s2, 3\ns_add_u32 s60, s60, s{sW}\ns_cmp_lg_u32 s60, {opt['dbgout']*8+4}\ns_cbranch_scc1 L_p2_end")
        o(f"v_lshlrev_b32 v3, 2, v2\ns_mov_b32 s61, {hx(WS_ST + (opt['dbgout']*8+4)*64)}\ns_mov_b64 exec, 0xff\nbuffer_load_dword v4, v3, s[{SWS}:{SWS+3}], s61 offen sc1\ns_waitcnt vmcnt(0)\nbuffer_store_dword v4, v3, s[{SDBG}:{SDBG+3}], 0 offen offset:4")
        o(f"s_mov_b64 exec, 1\nv_mov_b32 v4, s80\nv_mov_b32 v5, s82\nv_mov_b32 v6, s96\nv_mov_b32 v7, s98\nbuffer_store_dwordx4 v[4:7], v3, s[{SDBG}:{SDBG+3}], 0 offen offset:48")
        o(f"v_mov_b32 v4, s92\nv_mov_b32 v5, s94\nbuffer_store_dwordx2 v[4:5], v3, s[{SDBG}:{SDBG+3}], 0 offen offset:40")
    o("s_endpgm")
    o("L_p2_cons:\ns_waitcnt lgkmcnt(0)")
    srd(o, SWS, 12, 13, WS_SIZE)
    srd(o, SDBG, 10, 11, 256)
    if opt.get("fft3", 1):
        o(f"s_and_b32 s61, s{sET}, 3\ns_cmp_eq_u32 s61, 1\ns_cbranch_scc1 L_p2_nofft\ns_cmp_eq_u32 s{sW}, 3\ns_cbranch_scc1 L_p2_nofft")
        o(f"s_max_u32 s61, s61, 1\ns_sub_u32 s61, s61, 1\ns_lshr_b32 s62, s2, 5\ns_mul_i32 s62, s62, 3\ns_add_u32 s61, s61, s62\ns_and_b32 s62, s2, 7\ns_mul_i32 s62, s62, 24\ns_add_u32 s61, s61, s62")
        o(f"s_mul_i32 s60, s61, 3\ns_add_u32 s60, s60, s{sW}\ns_cmp_gt_u32 s60, 512\ns_cbranch_scc1 L_p2_nofft")
    else:
        o(f"s_lshl_b32 s60, s2, 1\ns_add_u32 s60, s60, s{sW}\ns_cmp_lt_u32 s{sW}, 2\ns_cbranch_scc1 L_p2_fft")
        o(f"s_mov_b32 s60, 512\ns_lshl_b32 s61, s2, 2\ns_add_u32 s61, s61, s{sW}\ns_cmp_lg_u32 s61, 2\ns_cbranch_scc1 L_p2_nofft")
    o("L_p2_fft:")
    if not opt.get("nofft"): fft(o)
    if ZFIRST: o("s_branch L_p2_nofft2\nL_p2_nofft:\ns_barrier\nL_p2_nofft2:")
    else: o("L_p2_nofft:")
    o(f"s_and_b32 s60, s{sW}, 1\ns_lshl_b32 s60, s60, 11\nv_lshlrev_b32 v3, 3, v2\nv_add_u32 v{VHB}, s60, v3")
    o(f"s_lshr_b32 s61, s{sW}, 1\ns_lshl_b32 s61, s61, 2\nv_lshrrev_b32 v4, 2, v2\nv_and_b32 v5, 7, v4\nv_xor_b32 v5, s61, v5\nv_lshlrev_b32 v4, 8, v4")
    o("v_and_b32 v6, 3, v2\nv_lshlrev_b32 v6, 3, v6\nv_add_u32 v4, v4, v6\nv_add_u32 v4, 0x4000, v4\nv_lshlrev_b32 v5, 5, v5")
    o(f"v_add_u32 v{VWB}, v4, v5")
    for u in range(1, 4): o(f"v_xor_b32 v{VWB+u}, {32*u}, v{VWB}")
    o(f"v_mov_b32 v{VHR}, v{VHB}")
    for u in range(4): o(f"v_mov_b32 v{VWR+u}, v{VWB+u}")
    o(f"s_mov_b32 s{sN}, 0\ns_mov_b32 s{sST}, 0\ns_cmp_eq_u32 s{sW}, 0\ns_cselect_b32 s{sK1}, 1, 99\nv_mov_b32 v3, 0\nv_mov_b32 v4, 1")
    o(f"s_mov_b32 s61, {hx(WS_TAG)}\nbuffer_load_dword v5, v3, s[{SWS}:{SWS+3}], s61 offen")
    stamp(o, opt, 1)
    o("s_barrier")
    for r in c_reads(0, 0): o(r)
    rp = opt.get("rp", 2)
    for blk, q4 in enumerate((0, 0, 1, 2, 3)):
        if blk == 1: o("s_branch L_p2_cmid\n.p2align 6\nL_p2_cloop:")
        if blk == 2: o("L_p2_cmid:")
        half = q4 & 1
        M = c_mfmas(half, blk == 0); R = c_reads(half ^ 1, half ^ 1)
        gaps = [[] for _ in range(16)]
        for i in range(16): gaps[i // rp].append(R[i])
        def issued(g): return min(16, (g + 1) * rp)
        if q4 == 3:
            o("s_waitcnt lgkmcnt(0)\ns_cbranch_scc1 L_p2_nobar\ns_barrier\nL_p2_nobar:")
            gaps[13].append(f"s_cmp_eq_u32 s{sN}, s{sK1}\ns_cbranch_scc1 L_p2_sig\nL_p2_sigd:")
            gaps[15].append(f"s_add_u32 s{sN}, s{sN}, 1\ns_cmp_lt_u32 s{sN}, {NK//2}")
        elif q4 == 1:
            o("s_waitcnt lgkmcnt(0)\ns_barrier")
        else:
            o("s_waitcnt lgkmcnt(8)")
            gaps[2].insert(0, f"s_waitcnt lgkmcnt({min(15, 4 + issued(1))})")
            gaps[3].append(f"s_waitcnt lgkmcnt({min(15, issued(3))})")
        if half == 0:
            gaps[9].append(f"s_add_u32 s{sST}, s{sST}, 32768\ns_cmp_ge_u32 s{sST}, {NST*32768}")
            gaps[10].append(f"s_cselect_b32 s{sST}, 0, s{sST}")
            gaps[11].append(f"v_add_u32 v{VHR}, s{sST}, v{VHB}"); gaps[12].append(f"v_add_u32 v{VWR}, s{sST}, v{VWB}")
            gaps[13].append(f"v_add_u32 v{VWR+1}, s{sST}, v{VWB+1}"); gaps[14].append(f"v_add_u32 v{VWR+2}, s{sST}, v{VWB+2}")
            gaps[15].append(f"v_add_u32 v{VWR+3}, s{sST}, v{VWB+3}")
        if q4 == 1: gaps[12].append(f"s_cmp_eq_u32 s{sN}, 1\ns_cbranch_scc1 L_p2_drain\nL_p2_draind:")
        if q4 == 2: gaps[15].append(f"s_cmp_eq_u32 s{sN}, {NK//2-1}")
        for i in range(16):
            if not opt.get("nomfma"): o(M[i])
            for g in gaps[i]:
                if opt.get("nomfma") and g.startswith("ds_read"): continue
                o(g)
    o("s_cbranch_scc1 L_p2_cloop")
    stamp(o, opt, 2)
    o(f"s_waitcnt lgkmcnt(0)\ns_nop 7\ns_lshr_b32 s60, s{sW}, 1\ns_and_b32 s61, s{sW}, 1\ns_lshl_b32 s61, s61, 14\nv_lshlrev_b32 v3, 4, v2")
    o(f"s_cmp_eq_u32 s60, s{sKH_}\ns_cbranch_scc1 L_p2_own")
    o(f"s_xor_b32 s62, s2, 1\ns_mul_i32 s62, s62, {XB_S}\ns_add_u32 s62, s62, s61\ns_add_u32 s62, s62, {hx(WS_XB)}")
    o("s_movk_i32 s63, 0xfff\ns_waitcnt vmcnt(0)")
    for i in range(16):
        for j in range(4): o(f"v_bfi_b32 v{ACC+4*i+j}, s63, v5, v{ACC+4*i+j}")
        o(f"buffer_store_dwordx4 {vr(ACC+4*i,4)}, v3, s[{SWS}:{SWS+3}], s62 offen offset:{(i&3)*1024} sc1")
        if (i & 3) == 3: o("s_add_u32 s62, s62, 4096")
    o("s_barrier\ns_branch L_p2_cend")
    o("L_p2_own:\nv_add_u32 v3, s61, v3")
    for i in range(16): o(f"ds_write_b128 v3, {vr(ACC+4*i,4)} offset:{i*1024}")
    o("s_waitcnt lgkmcnt(0)\ns_barrier")
    o("L_p2_cend:")
    stamp(o, opt, 3)
    stamp_out(o, opt, 1, sW, SWS, 5)
    o("L_p2_end:\ns_endpgm")
    o(f"L_p2_sig:\ns_mov_b64 exec, 1\nbuffer_atomic_add v4, v3, s[{SDBG}:{SDBG+3}], 0 offen sc1\ns_mov_b64 exec, -1\ns_branch L_p2_sigd\nL_p2_drain:\ns_waitcnt vmcnt(0)\ns_branch L_p2_draind")
    return o.text(), kd(name, 256)
```

```python
import struct
S, D, F = 2048, 1024, 3584
import os
H_PS = int(os.environ.get("H_PS", 16384))
H_SS = int(os.environ.get("H_SS", 262144))
XB_S = int(os.environ.get("XB_S", 32768))
WS_H   = 0x0000000
WS_Z   = 0x1400000
WS_G   = 0x1900000
WS_TAG = 0x1910000
WS_TK  = 0x1911000
WS_ZF  = 0x1912000
WS_HF  = 0x1913000
WS_YF  = 0x1914000
WS_YT  = 0x1A00000
WS_XB  = 0x1F00000
WS_ST  = 0x2A00000
WS_SIZE = 0x2B00000
def f2u(x): return struct.unpack("<I", struct.pack("<f", x))[0]
def hx(x): return "0x%08x" % (x & 0xffffffff)
class Asm:
    def __init__(self): self.L = []
    def __call__(self, s):
        for l in s.split("\n"):
            l = l.strip()
            if l: self.L.append(("" if l.endswith(":") else "    ") + l)
    def text(self): return "\n".join(self.L) + "\n"
def vr(a, n=1): return f"v{a}" if n == 1 else f"v[{a}:{a+n-1}]"
def sr(a, n=1): return f"s{a}" if n == 1 else f"s[{a}:{a+n-1}]"
def kd(name, vgpr, sgpr=102, accum=None):
    accum = accum or ((vgpr + 3) // 4 * 4)
    return f""".p2align 6
.amdhsa_kernel {name}
  .amdhsa_next_free_vgpr {vgpr}
  .amdhsa_next_free_sgpr {sgpr}
  .amdhsa_accum_offset {accum}
  .amdhsa_group_segment_fixed_size 0
  .amdhsa_kernarg_size 104
  .amdhsa_user_sgpr_count 2
  .amdhsa_user_sgpr_kernarg_segment_ptr 1
  .amdhsa_system_sgpr_workgroup_id_x 1
.end_amdhsa_kernel
"""
def srd(o, d, lo, hi, nbytes):
    o(f"s_mov_b32 s{d}, s{lo}\ns_and_b32 s{d+1}, s{hi}, 0xffff\ns_mov_b32 s{d+2}, {hx(nbytes)}\ns_mov_b32 s{d+3}, 0x20000")

def stamp(o, opt, i):
    if opt.get("stamp"):
        o(f"s_memrealtime s[{80+4*i}:{81+4*i}]\ns_memtime s[{82+4*i}:{83+4*i}]\ns_waitcnt lgkmcnt(0)")
def stamp_out(o, opt, kidx, sW, srdn, n):
    if opt.get("stamp"):
        o(f"s_waitcnt vmcnt(0)\ns_memrealtime s[{80+4*(n-1)}:{81+4*(n-1)}]\ns_memtime s[{82+4*(n-1)}:{83+4*(n-1)}]\ns_waitcnt lgkmcnt(0)")
        o(f"s_lshl_b32 s60, s2, 3\ns_add_u32 s60, s60, s{sW}\ns_lshl_b32 s60, s60, 6\ns_add_u32 s60, s60, {hx(WS_ST + kidx*131072)}\nv_mov_b32 v1, 0\ns_mov_b64 exec, 1")
        for i in range(n):
            o(f"v_mov_b32 v4, s{80+4*i}\nv_mov_b32 v5, s{82+4*i}\nbuffer_store_dwordx2 v[4:5], v1, s[{srdn}:{srdn+3}], s60 offen offset:{8*i}\ns_nop 1")
        o("s_mov_b64 exec, -1")

def hx64(x): return "-1" if x == (1 << 64) - 1 else hex(x)

def setexec(n): return "s_mov_b64 exec, -1" if n == 64 else f"s_bfm_b64 exec, {n}, 0"

sTAG, sTKB, sCOL, sZFW = 44, 45, 46, 47
```

```python
from common import *
import math

ACC = 128
def acc(mt, i, mat): return ACC + (mt * 8 + i * 2 + mat) * 4
SETS = [dict(X=16, W=32), dict(X=64, W=80)]
VAR, VBR, VBR0, VAD, VBD = 112, 114, 118, 122, 126
SA, SB0, SB1, SWS, SM1 = 24, 28, 32, 36, 40
sW, sMB_, sNB, sKA, sKB, sMA, sC, sN, sWB, sROW = 48, 49, 50, 53, 54, 56, 57, 58, 59, 70
SPF, sPFX, sPFO, sPFS = 96, 94, 92, 93
STR = 7168
KNAME = "gated_mix__spectral_fnet__geglu_ffn__prompt_kernel"
ZP = 16512

def reads(st, ks, nf):
    s = SETS[st]
    def w(n, rd): return f"ds_read_b64_tr_b16 {vr(s['W']+n*4+rd*2,2)}, v{VBR+(n>>1)} offset:{ks*16384+(n&1)*2048+rd*1024}"
    def x(mt): return f"ds_read_b128 {vr(s['X']+mt*4,4)}, v{VAR+ks} offset:{mt*2048}"
    r = [x(0)]
    for n in range(2*nf):
        r += [w(n, 0), w(n, 1)]
    r += [x(1), x(2), x(3)]
    return r

def mfmas(st, nf, zero=False):
    s = SETS[st]; r = []
    for mt in range(4):
        for n in (range(2*nf) if mt % 2 == 0 else range(2*nf-1, -1, -1)):
            A = vr(acc(mt, n >> 1, n & 1), 4)
            r.append(f"v_mfma_f32_16x16x32_bf16 {A}, {vr(s['W']+n*4,4)}, {vr(s['X']+mt*4,4)}, {'0' if zero else A}")
    return r

def dmaA(j): return f"buffer_load_dwordx4 v{VAD+j}, s[{SA}:{SA+3}], s{sKA} offen offset:{j*1024} lds"
def dmaB(j):
    srdn = SB0 if j < 2 else SB1
    return f"buffer_load_dwordx4 v{VBD+(j&1)}, s[{srdn}:{srdn+3}], s{sKB} offen offset:{j*1024} lds"

def gate_tail():
    fl = []
    for dpp in ["quad_perm:[1,0,3,2]", "quad_perm:[2,3,0,1]", "row_half_mirror", "row_mirror"]:
        fl.append(f"v_add_f32_dpp v14, v14, v14 {dpp} row_mask:0xf bank_mask:0xf\nv_add_f32_dpp v15, v15, v15 {dpp} row_mask:0xf bank_mask:0xf")
    for i in range(4): fl.append(f"v_readlane_b32 s{72+i}, v14, {16*i}\nv_readlane_b32 s{76+i}, v15, {16*i}")
    fl.append("s_nop 0"); fl.append("v_mov_b32 v14, s72\nv_mov_b32 v15, s76")
    for i in range(1, 4): fl.append(f"v_add_f32 v14, s{72+i}, v14\nv_add_f32 v15, s{76+i}, v15")
    fl += ["v_cmp_eq_u32 vcc, 1, v2", "s_nop 0", "v_cndmask_b32 v14, v14, v15, vcc", "v_cvt_pk_bf16_f32 v14, v14, v14", "v_lshlrev_b32 v14, 16, v14",
           f"v_mul_f32 v14, {hx(f2u(-math.log2(math.e)))}, v14", "v_exp_f32 v14, v14", "v_add_f32 v14, 1.0, v14", "v_rcp_f32 v14, v14",
           "v_cvt_pk_bf16_f32 v14, v14, v14", "v_lshlrev_b32 v14, 16, v14"]
    return fl

def block(o, nf, opt, ks, zero=False, dma=True, pf=True, wait=None, extra=None, loopctl=False):
    NG = 8*nf; PF = opt.get("pf1", 4)
    M = mfmas(ks, nf, zero); R = reads(ks ^ 1, ks ^ 1, nf); nr = len(R)
    gaps = [[] for _ in range(NG)]
    for i in range(nr): gaps[i].append(R[i])
    if ks == 0:
        pre = "s_waitcnt lgkmcnt(0)"
        if dma:
            gaps[1].append(f"s_add_u32 m0, s{sC}, s{sWB}")
            for j in range(4): gaps[2+4*j].append(dmaB(j))
            gaps[15].append(f"s_add_u32 s{sKB}, s{sKB}, {64*STR}\ns_add_u32 s{sKA}, s{sKA}, 128")
        gaps[3].append(f"s_add_u32 s60, s{sC}, 32768\ns_cmp_ge_u32 s60, 98304\ns_cselect_b32 s{sC}, 0, s60")
        gaps[5].append(f"s_add_u32 s60, s{sC}, 32768\ns_cmp_ge_u32 s60, 98304\ns_cselect_b32 s61, 0, s60")
        gaps[nr].append(f"v_xor_b32 v{VAR}, 0x8000, v{VAR}"); gaps[nr+1].append(f"v_xor_b32 v{VAR+1}, 0x8000, v{VAR+1}")
        for i in range(nf): gaps[nr+2+i].append(f"v_add_u32 v{VBR+i}, s61, v{VBR0+i}")
        if PF and pf: gaps[NG-2].append(f"s_mov_b64 exec, s[{sPFX}:{sPFX+1}]\nbuffer_load_dword v1, v0, s[{SPF}:{SPF+3}], s{sPFO} offen\ns_mov_b64 exec, -1\ns_add_u32 s{sPFO}, s{sPFO}, s{sPFS}")
        if loopctl: gaps[NG-1].append(f"s_add_u32 s{sN}, s{sN}, 1\ns_cmp_lt_u32 s{sN}, 13")
    else:
        pre = f"s_mov_b32 m0, s{sMA}\ns_waitcnt vmcnt({wait}) lgkmcnt(0)\ns_barrier"
        if dma:
            for j in range(4): gaps[2*j].append(dmaA(j))
            gaps[nr].append(f"s_xor_b32 s{sMA}, s{sMA}, 0x8000")
    for g, txt in (extra or []): gaps[g].append(txt)
    o(pre)
    for i in range(NG):
        o(M[i])
        for g in gaps[i]: o(g)

def wd_touch():
    r = f"s_mov_b32 s{SM1}, s20\ns_and_b32 s{SM1+1}, s21, 0xffff\ns_mov_b32 s{SM1+2}, {hx(F*D*2)}\ns_mov_b32 s{SM1+3}, 0x20000\n"
    r += f"s_mul_i32 s62, s2, 28672\ns_mul_i32 s63, s{sW}, 3584\ns_add_u32 s62, s62, s63\nv_lshlrev_b32 v0, 7, v2\n"
    r += f"s_mov_b64 exec, 0xfffffff\nbuffer_load_dword v1, v0, s[{SM1}:{SM1+3}], s62 offen\ns_mov_b64 exec, -1"
    return r

def gelu_stream(nf, opt, mt):
    hst = opt.get('hst', 'sc1'); out = []
    groups = [(0, 1), (2, 3)] if nf == 4 else [(0, 1), (2,)]
    for gi, grp in enumerate(groups):
        T = 4 if gi == 0 else 112
        G = [acc(mt, i, 0) + r for i in grp for r in range(4)]; U = [g + 4 for g in G]; n = len(G)
        out += [f"v_mul_f32 v{T+k}, v{G[k]}, v{G[k]}" for k in range(n)]
        out += [f"v_fma_f32 v{T+k}, v{T+k}, s60, v12" for k in range(n)]
        out += [f"v_mul_f32 v{T+k}, v{T+k}, v{G[k]}" for k in range(n)]
        out += [f"v_exp_f32 v{T+k}, v{T+k}" for k in range(n)]
        out += [f"v_mul_f32 v{U[k]}, v{G[k]}, v{U[k]}" for k in range(n)]
        out += [f"v_add_f32 v{T+k}, 1.0, v{T+k}" for k in range(n)]
        out += [f"v_rcp_f32 v{T+k}, v{T+k}" for k in range(n)]
        out += ["s_nop 0"]
        out += [f"v_mul_f32 v{U[k]}, v{U[k]}, v{T+k}" for k in range(n)]
        for j, i in enumerate(grp):
            g0 = acc(mt, i, 0); u0 = g0 + 4
            out += [f"v_cvt_pk_bf16_f32 v{g0}, v{u0}, v{u0+1}", f"v_cvt_pk_bf16_f32 v{g0+1}, v{u0+2}, v{u0+3}",
                    f"buffer_store_dwordx2 {vr(g0,2)}, v13, s[{SWS}:{SWS+3}], s{64+i} offen offset:{mt*512} {hst}"]
    return out

def epi_setup(nf):
    c0 = -2.0 * math.sqrt(2.0/math.pi) * math.log2(math.e); c1 = c0 * 0.044715
    r = [f"v_mov_b32 v12, {hx(f2u(c0))}\nv_lshlrev_b32 v13, 3, v2",
         f"s_mul_i32 s71, s{sNB}, 7\ns_add_u32 s71, s71, {0 if nf == 4 else 4}\ns_lshl_b32 s62, s{sMB_}, 1\ns_bfe_u32 s63, s{sW}, 0x10001",
         f"s_add_u32 s62, s62, s63\ns_mul_i32 s62, s62, {H_PS}\ns_and_b32 s63, s{sW}, 1\ns_lshl_b32 s63, s63, 11\ns_add_u32 s62, s62, s63\ns_add_u32 s62, s62, {hx(WS_H)}\ns_mov_b32 s60, {hx(f2u(c1))}"]
    for i in range(nf):
        r.append(f"s_add_u32 s63, s71, {i}\ns_lshr_b32 s72, s63, 2\ns_mul_i32 s72, s72, {H_SS}\ns_and_b32 s63, s63, 3\ns_lshl_b32 s63, s63, 12\ns_add_u32 s63, s63, s72\ns_add_u32 s{64+i}, s62, s63")
    return r

def mainloop(o, nf, opt):
    tag = f"n{nf}"; NG = 8*nf; PF = 1 if opt.get("pf1", 4) else 0; FU = opt.get("fused")
    block(o, nf, opt, 0, zero=True, extra=list(enumerate(gate_tail())) if nf == 3 else None)
    o(f".p2align 6\nL_loop_{tag}:")
    block(o, nf, opt, 1, wait=4+PF)
    block(o, nf, opt, 0, loopctl=True)
    o(f"s_cbranch_scc1 L_loop_{tag}")
    block(o, nf, opt, 1, wait=4+PF, extra=[(9, small_stores(nf, "sc1"))])
    block(o, nf, opt, 0, dma=False, pf=False, extra=[(NG-3, wd_touch())])
    block(o, nf, opt, 1, dma=False, wait=4, extra=[(10+i, t) for i, t in enumerate(epi_setup(nf))])
    def mm(st, mt, rev):
        M = mfmas(st, nf); seg = M[mt*2*nf:(mt+1)*2*nf]
        return seg
    R = reads(1, 1, nf)
    o("s_waitcnt lgkmcnt(0)")
    first = mm(0, 0, 0) + mm(0, 1, 0)
    per = -(-len(R) // len(first))
    for i, m in enumerate(first):
        o(m)
        for r in R[i*per:(i+1)*per]: o(r)
    if FU:
        o("s_waitcnt vmcnt(1) lgkmcnt(0)\ns_barrier")
        if nf == 3:
            o(f"s_cmp_lg_u32 s{sW}, 7\ns_cbranch_scc1 L_nozf\ns_lshl_b32 s62, s2, 2\ns_add_u32 s62, s62, {hx(WS_ZF)}\nv_mov_b32 v4, s{sTAG}\ns_mov_b64 exec, 1\nbuffer_store_dword v4, v3, s[{SWS}:{SWS+3}], s62 offen sc1\ns_mov_b64 exec, -1\nL_nozf:")
    else: o("s_waitcnt lgkmcnt(0)")
    for m in mm(1, 0, 0): o(m)
    rest = [mm(1, 1, 0) + mm(0, 2, 0), mm(1, 2, 0) + mm(0, 3, 0), mm(1, 3, 0)]
    lead = opt.get("lead", 4)
    for mt in range(3):
        V = gelu_stream(nf, opt, mt); Ms = rest[mt]
        for m in Ms[:lead]: o(m)
        o("s_nop 3")
        Ms = Ms[lead:]
        step = max(1, len(V) // (len(Ms) + 1)) if opt.get("spread", 1) else 3
        k = 0
        for i, v in enumerate(V):
            o(v)
            if (i + 1) % step == 0 and k < len(Ms): o(Ms[k]); k += 1
        for m in Ms[k:]: o(m)
    pt(o, opt, "loopend")
    o("s_nop 7")
    for v in gelu_stream(nf, opt, 3): o(v)

def small_stores(nf, hst):
    r = f"s_and_b32 s60, s2, 63\ns_lshl_b32 s60, s60, 2\ns_lshr_b32 s64, s2, 6\ns_add_u32 s60, s60, s64\ns_mul_i32 s60, s60, {ZP}\ns_add_u32 s60, s60, {hx(WS_Z)}\n"
    r += f"s_lshl_b32 s64, s{sW}, 11\ns_add_u32 s64, s64, s60\n"
    r += f"buffer_store_dwordx4 v[4:7], v3, s[{SWS}:{SWS+3}], s64 offen {hst}\nbuffer_store_dwordx4 v[8:11], v3, s[{SWS}:{SWS+3}], s64 offen offset:1024 {hst}\n"
    if nf == 4: r += f"s_lshl_b32 s62, s{sW}, 2\ns_add_u32 s62, s62, s60\ns_add_u32 s62, s62, 16384\ns_mov_b64 exec, 1\nbuffer_store_dword v12, v3, s[{SWS}:{SWS+3}], s62 offen {hst}\ns_mov_b64 exec, -1\ns_nop 0"
    else: r += f"s_lshl_b32 s63, s{sROW}, 2\ns_add_u32 s63, s63, {hx(WS_G)}\nv_lshlrev_b32 v13, 8, v2\ns_mov_b64 exec, 3\nbuffer_store_dword v14, v13, s[{SWS}:{SWS+3}], s63 offen {hst}\ns_mov_b64 exec, -1"
    return r

def dma_addrs(o):
    o(f"s_lshl_b32 s66, s{sMB_}, 8\ns_lshl_b32 s67, s{sW}, 5\ns_add_u32 s66, s66, s67\ns_lshl_b32 s66, s66, 11")
    o("v_lshrrev_b32 v4, 3, v2\nv_lshlrev_b32 v4, 11, v4\nv_add_u32 v4, s66, v4")
    o("v_and_b32 v5, 7, v2\nv_lshrrev_b32 v6, 4, v2\nv_xor_b32 v5, v5, v6\nv_lshlrev_b32 v5, 4, v5")
    o(f"v_add_u32 v{VAD}, v4, v5\nv_xor_b32 v5, 64, v5\nv_add_u32 v4, v4, v5\nv_add_u32 v{VAD+1}, {16384-1024}, v4\nv_add_u32 v{VAD+2}, {2*(16384-1024)}, v{VAD}\nv_add_u32 v{VAD+3}, {2*(16384-1024)}, v{VAD+1}")
    o(f"s_lshl_b32 s66, s{sW}, 3\nv_add_u32 v5, s66, v6\nv_mul_u32_u24 v5, {STR}, v5\ns_and_b32 s66, s{sW}, 1\ns_lshl_b32 s66, s66, 1\ns_mul_i32 s65, s{sNB}, 224")
    o("v_lshlrev_b32 v4, 2, v6\nv_and_b32 v6, 15, v2\nv_xor_b32 v4, v4, v6\nv_xor_b32 v4, s66, v4\nv_cmp_gt_u32 vcc, 14, v4\nv_lshlrev_b32 v4, 4, v4\nv_add_u32 v5, v5, v4\nv_add_u32 v5, s65, v5\nv_mov_b32 v4, 0x7f000000")
    o(f"v_cndmask_b32 v{VBD}, v4, v5, vcc\nv_add_u32 v{VBD+1}, {4*STR-1024}, v{VBD}")

def loop_addrs(o, opt, t):
    a, b, c, d = t, t+1, t+2, t+3
    o(f"s_and_b32 s66, s{sW}, 3\ns_lshl_b32 s66, s66, 13\nv_and_b32 v{a}, 15, v2\nv_lshlrev_b32 v{b}, 7, v{a}\nv_add_u32 v{b}, s66, v{b}")
    o(f"v_lshrrev_b32 v{c}, 1, v{a}\nv_lshrrev_b32 v{d}, 4, v2\nv_xor_b32 v{c}, v{c}, v{d}")
    o(f"v_lshlrev_b32 v{c}, 4, v{c}\nv_add_u32 v{VAR}, v{b}, v{c}\nv_xor_b32 v{VAR+1}, 64, v{VAR}")
    o(f"v_lshrrev_b32 v{a}, 2, v2\nv_and_b32 v{a}, 3, v{a}\nv_lshlrev_b32 v{b}, 1, v{a}\nv_and_b32 v{c}, 1, v{d}\nv_add_u32 v{b}, v{b}, v{c}\ns_and_b32 s66, s{sW}, 4\nv_xor_b32 v{b}, s66, v{b}\nv_lshlrev_b32 v{b}, 5, v{b}")
    o(f"v_lshlrev_b32 v{a}, 8, v{a}\nv_add_u32 v{a}, v{a}, v{b}\nv_lshlrev_b32 v{b}, 12, v{d}\nv_add_u32 v{a}, v{a}, v{b}\nv_and_b32 v{b}, 3, v2\nv_lshlrev_b32 v{b}, 3, v{b}\nv_add_u32 v{a}, v{a}, v{b}\nv_add_u32 v{VBR0}, 0x10000, v{a}")
    for i in range(1, 4): o(f"v_xor_b32 v{VBR0+i}, {32*i}, v{VBR0}")
    for i in range(4): o(f"v_mov_b32 v{VBR+i}, v{VBR0+i}")
    PF = opt.get("pf1", 4)
    if PF:
        if t == 8:
            o(f"s_cmp_ge_u32 s{sW}, 2\ns_cselect_b32 s{SPF}, s{SB1}, s{SB0}\ns_cselect_b32 s{SPF+1}, s{SB1+1}, s{SB0+1}\ns_cselect_b32 s{SPF+2}, s{SB1+2}, s{SB0+2}\ns_cselect_b32 s71, 2048, 0")
            o(f"s_mul_i32 s72, s2, {14*128}\ns_and_b32 s73, s{sW}, 1\ns_mul_i32 s73, s73, {7*128}\ns_add_u32 s72, s72, s73\ns_add_u32 s72, s72, s71\nv_lshlrev_b32 v0, 7, v2\nv_add_u32 v0, s72, v0\ns_mov_b32 s{sPFS}, {64*STR}\ns_mov_b64 s[{sPFX}:{sPFX+1}], 0x7f")
        else:
            o(f"s_mov_b32 s{SPF}, s{SA}\ns_mov_b32 s{SPF+1}, s{SA+1}\ns_mov_b32 s{SPF+2}, s{SA+2}")
            o(f"s_lshl_b32 s72, s2, 3\ns_sub_u32 s73, s{sW}, 4\ns_lshl_b32 s73, s73, 1\ns_add_u32 s72, s72, s73\nv_add_u32 v0, s72, v2\nv_lshlrev_b32 v0, 11, v0\ns_mov_b32 s{sPFS}, 128\ns_mov_b64 s[{sPFX}:{sPFX+1}], 3")
        o(f"s_mov_b32 s{SPF+3}, 0x20000\ns_mul_i32 s{sPFO}, s{sPFS}, {PF}")

def pf_init(o, opt):
    PF = opt.get("pf1", 4)
    if PF > 2 and opt.get("pfi", 0):
        o(f"s_lshl_b32 s71, s{sPFS}, 1\ns_mov_b64 exec, s[{sPFX}:{sPFX+1}]")
        for i in range(2, PF): o(f"buffer_load_dword v1, v0, s[{SPF}:{SPF+3}], s71 offen\ns_add_u32 s71, s71, s{sPFS}")
        o("s_mov_b64 exec, -1")

def pt(o, opt, name):
    pts = opt.get("pst", ["bar", "loopend"])
    if name in pts: stamp(o, opt, 1 + pts.index(name))

def gen_p1(opt):
    o = Asm()
    FU = opt.get("fused")
    name = KNAME if FU else "p1_kernel"
    o(f".globl {name}\n.p2align 8\n.type {name},@function\n{name}:")
    o("s_cmp_ge_u32 s2, 256\ns_cbranch_scc1 L_p1_end")
    stamp(o, opt, 0)
    o("s_load_dwordx2 s[4:5], s[0:1], 0\ns_load_dwordx4 s[12:15], s[0:1], 48\ns_load_dwordx4 s[20:23], s[0:1], 64\ns_load_dwordx2 s[18:19], s[0:1], 96")
    if FU: o("s_load_dwordx2 s[8:9], s[0:1], 80")
    o(f"v_lshrrev_b32 v1, 6, v0\nv_and_b32 v2, 63, v0\ns_nop 0\nv_readfirstlane_b32 s{sW}, v1")
    o("s_and_b32 s60, s2, 7\ns_lshr_b32 s61, s2, 3")
    o(f"s_and_b32 s62, s60, 6\ns_and_b32 s63, s61, 1\ns_add_u32 s{sMB_}, s62, s63\ns_and_b32 s62, s60, 1\ns_lshl_b32 s62, s62, 4\ns_lshr_b32 s63, s61, 1\ns_add_u32 s{sNB}, s62, s63")
    o(f"v_lshlrev_b32 v3, 4, v2\ns_lshl_b32 s66, s{sW}, 12\ns_add_u32 s{sWB}, s66, 65536\ns_mov_b32 s{sMA}, s66\ns_mov_b32 s{sC}, 65536\ns_mov_b32 s{sN}, 0")
    o(f"s_lshr_b32 s63, s2, 6\ns_lshl_b32 s63, s63, 2\ns_and_b32 s62, s{sW}, 1\ns_lshl_b32 s62, s62, 1\ns_add_u32 s63, s63, s62\ns_and_b32 s62, s{sW}, 2\ns_lshl_b32 s62, s62, 3\ns_add_u32 s62, s62, s63\ns_lshl_b32 s62, s62, 6\ns_and_b32 s63, s2, 63\ns_add_u32 s{sROW}, s62, s63")
    o(f"s_lshl_b32 s63, s{sROW}, 11\ns_add_u32 s64, s63, {64*2048}")
    o(f"s_lshl_b32 s68, s{sW}, 11\ns_add_u32 s68, s68, 131072\ns_cmp_lt_u32 s{sW}, 4\ns_cbranch_scc1 L_p1_fft")
    dma_addrs(o)
    for j in range(4): o(f"v_subrev_u32 v{16+j}, {128*2048}, v{VAD+j}")
    for j in range(2): o(f"v_subrev_u32 v{20+j}, {32*STR}, v{VBD+j}")
    o(f"s_mov_b32 s{sKA}, 0\ns_mov_b32 s{sKB}, 0\ns_waitcnt lgkmcnt(0)")
    def srds():
        srd(o, SA, 4, 5, S*D*2); srd(o, SB0, 12, 13, D*F*2)
        o("s_sub_u32 s14, s14, 2048\ns_subb_u32 s15, s15, 0")
        srd(o, SB1, 14, 15, D*F*2 + 2048); srd(o, SWS, 18, 19, WS_SIZE)
        if FU:
            o(f"s_mov_b32 s60, {hx(WS_TAG)}\ns_and_b32 s61, s2, 7\ns_lshl_b32 s61, s61, 7\ns_add_u32 s61, s61, {hx(WS_TK)}\ns_load_dword s{sTAG}, s[18:19], s60\ns_load_dword s{sTKB}, s[18:19], s61")
            o(f"s_cmp_eq_u32 s{sW}, 7\ns_cselect_b32 s{sZFW}, 15, 99")
    srds()
    srd(o, SM1, 22, 23, D*2)
    XG = [64, 72]
    for b in range(2): o(f"buffer_load_dwordx4 {vr(XG[b],4)}, v3, s[{SA}:{SA+3}], s{63+b} offen\nbuffer_load_dwordx4 {vr(XG[b]+4,4)}, v3, s[{SA}:{SA+3}], s{63+b} offen offset:1024")
    o(f"buffer_load_dwordx4 v[80:83], v3, s[{SM1}:{SM1+3}], 0 offen\nbuffer_load_dwordx4 v[84:87], v3, s[{SM1}:{SM1+3}], 0 offen offset:1024")
    loop_addrs(o, opt, 24)
    pf_init(o, opt)
    npf = max(0, opt.get("pf1", 4) - 2) if opt.get("pfi", 0) else 0
    for st in range(2):
        if st == 1:
            o(f"s_waitcnt vmcnt({16+npf})\nv_mov_b32 v14, 0\nv_mov_b32 v15, 0\ns_mov_b32 s72, 0x3f803f80")
            for i in range(8):
                g = 80+i; t = 24 + 4*(i & 1)
                o(f"v_and_b32 v8, 0xffff, v{g}\nv_and_b32 v9, 0xffff0000, v{g}")
                for b in range(2): o(f"v_dot2_f32_bf16 v{t+2*b}, v{XG[b]+i}, v8, 0\nv_dot2_f32_bf16 v{t+2*b+1}, v{XG[b]+i}, v9, 0")
                if i: o(f"v_dot2_f32_bf16 v14, v{XG[0]+i-1}, s72, v14\nv_dot2_f32_bf16 v15, v{XG[1]+i-1}, s72, v15")
                o(f"s_nop {0 if i else 2}\nv_cvt_pk_bf16_f32 v{XG[0]+i}, v{t}, v{t+1}\nv_cvt_pk_bf16_f32 v{XG[1]+i}, v{t+2}, v{t+3}")
            o(f"v_dot2_f32_bf16 v14, v{XG[0]+7}, s72, v14\nv_dot2_f32_bf16 v15, v{XG[1]+7}, s72, v15")
        o(f"s_add_u32 m0, s{sMA}, {st*32768 - 16384}\ns_nop 0" if st else f"s_sub_u32 m0, s{sMA}, 16384\ns_nop 0")
        for j in range(4): o(dmaA(j).replace(f"v{VAD+j},", f"v{16+j},"))
        o("s_add_u32 m0, m0, 16384\ns_nop 0")
        for j in range(4): o(dmaA(j))
        o(f"s_add_u32 m0, s{sWB}, {st*32768 - 16384}\ns_nop 0" if st else f"s_sub_u32 m0, s{sWB}, 16384\ns_nop 0")
        for j in range(4): o(dmaB(j).replace(f"v{VBD+(j&1)},", f"v{20+(j&1)},"))
        o("s_add_u32 m0, m0, 16384\ns_nop 0")
        for j in range(4): o(dmaB(j))
        o(f"s_mov_b32 s{sKA}, 128\ns_add_u32 s{sKB}, s{sKB}, {64*STR}")
    o("s_waitcnt vmcnt(16)\ns_branch L_p1_join")
    o("L_p1_fft:")
    o(f"s_mov_b32 m0, s68\ns_mov_b32 s{sKA}, 128\ns_mov_b32 s{sKB}, {128*STR}")
    o("s_waitcnt lgkmcnt(0)")
    pt(o, opt, "sload")
    srd(o, SA, 4, 5, S*D*2)
    o(f"buffer_load_dwordx4 v3, s[{SA}:{SA+3}], s63 offen lds\nbuffer_load_dwordx4 v3, s[{SA}:{SA+3}], s63 offen offset:1024 lds\ns_add_u32 m0, m0, 8192")
    o("s_nop 0")
    o(f"buffer_load_dwordx4 v3, s[{SA}:{SA+3}], s64 offen lds\nbuffer_load_dwordx4 v3, s[{SA}:{SA+3}], s64 offen offset:1024 lds")
    srds()
    dma_addrs(o)
    loop_addrs(o, opt, 8)
    pf_init(o, opt)
    C1, S1, N1, T0, TW = 16, 24, 32, 40, 128
    U = [160, 192]; V = [40, 88]; XF = [56, 104]; XR = [64, 72]; ZR = [224, 160]
    o("v_and_b32 v4, 31, v2\nv_lshrrev_b32 v5, 5, v2\nv_cvt_f32_u32 v8, v4\nv_cvt_f32_u32 v9, v5\nv_and_b32 v10, 1, v2\nv_mul_u32_u24 v10, 0x8000, v10\nv_mul_u32_u24 v10, 0x10001, v10\nv_mul_f32 v9, v8, v9")
    o(f"v_mul_f32 v11, {hx(f2u(4/32.))}, v9")
    for j in range(8):
        t = 12 + (j & 3)
        o(f"v_fmamk_f32 v{t}, v8, {hx(f2u((8*(j>>2)+(j&3))/32.))}, v11\nv_fract_f32 v{t}, v{t}\nv_cos_f32 v{T0+j}, v{t}\nv_sin_f32 v{T0+8+j}, v{t}")
    o(f"v_mul_f32 v11, {hx(f2u(4/1024.))}, v9")
    for i in range(4): o(f"v_cvt_pk_bf16_f32 v{C1+i}, v{T0+2*i}, v{T0+2*i+1}\nv_cvt_pk_bf16_f32 v{S1+i}, v{T0+8+2*i}, v{T0+8+2*i+1}")
    for i in range(4): o(f"v_xor_b32 v{C1+4+i}, v{C1+i}, v10\nv_xor_b32 v{S1+4+i}, v{S1+i}, v10")
    for i in range(8): o(f"v_xor_b32 v{N1+i}, 0x80008000, v{S1+i}")
    o("v_lshlrev_b32 v6, 8, v5\nv_lshrrev_b32 v7, 2, v2\nv_and_b32 v7, 3, v7\nv_lshlrev_b32 v7, 6, v7\nv_add_u32 v6, v6, v7\nv_and_b32 v7, 16, v2\nv_lshlrev_b32 v7, 1, v7\nv_add_u32 v6, v6, v7\nv_and_b32 v7, 3, v2\nv_lshlrev_b32 v7, 3, v7\nv_add_u32 v6, v6, v7\nv_add_u32 v6, s68, v6")
    for r in range(16):
        t = 12 + (r & 3)
        o(f"v_fmamk_f32 v{t}, v8, {hx(f2u((8*(r>>2)+(r&3))/1024.))}, v11\nv_cos_f32 v{TW+r}, v{t}\nv_sin_f32 v{TW+16+r}, v{t}")
    o(f"v_lshlrev_b32 v12, 4, v4\nv_lshlrev_b32 v13, 11, v5\nv_add_u32 v12, v12, v13\ns_lshl_b32 s62, s{sW}, 2\ns_add_u32 s62, s62, {131072+16384}\nv_add_u32 v12, s62, v12")
    pt(o, opt, "const")
    if FU: o("s_waitcnt lgkmcnt(0)")
    o(f"s_waitcnt vmcnt({npf})")
    pt(o, opt, "xrow")
    for b in range(2):
        for kap in range(2):
            for rd in range(2): o(f"ds_read_b64_tr_b16 {vr(XF[b]+4*kap+2*rd,2)}, v6 offset:{b*8192+kap*1024+rd*512}")
    mf = "v_mfma_f32_32x32x16_bf16"
    for b in range(2):
        o(f"s_waitcnt lgkmcnt({4-4*b})")
        o(f"{mf} {vr(U[b],16)}, {vr(XF[b],4)}, {vr(C1,4)}, 0\n{mf} {vr(U[b]+16,16)}, {vr(XF[b],4)}, {vr(N1,4)}, 0")
        o(f"{mf} {vr(U[b],16)}, {vr(XF[b]+4,4)}, {vr(C1+4,4)}, {vr(U[b],16)}\n{mf} {vr(U[b]+16,16)}, {vr(XF[b]+4,4)}, {vr(N1+4,4)}, {vr(U[b]+16,16)}")
    o("s_nop 7")
    def twid(b):
        for i in range(0, 16, 2):
            t = 56 + 4*((i >> 1) & 1)
            ur, ui, c, s_ = vr(U[b]+i,2), vr(U[b]+16+i,2), vr(TW+i,2), vr(TW+16+i,2)
            o(f"v_pk_mul_f32 {vr(t,2)}, {ur}, {c}\nv_pk_mul_f32 {vr(t+2,2)}, {ui}, {c}")
            o(f"v_pk_fma_f32 {vr(t,2)}, {ui}, {s_}, {vr(t,2)}\nv_pk_fma_f32 {vr(t+2,2)}, {ur}, {s_}, {vr(t+2,2)} neg_lo:[1,0,0] neg_hi:[1,0,0]")
            o(f"v_cvt_pk_bf16_f32 v{V[b]+i//2}, v{t}, v{t+1}\nv_cvt_pk_bf16_f32 v{V[b]+8+i//2}, v{t+2}, v{t+3}")
        o("s_nop 1")
        zr, zi = vr(ZR[b], 16), vr(ZR[b]+16, 16); re, im = V[b], V[b]+8
        o(f"{mf} {zr}, {vr(C1,4)}, {vr(re,4)}, 0\n{mf} {zi}, {vr(C1,4)}, {vr(im,4)}, 0")
        o(f"{mf} {zr}, {vr(S1,4)}, {vr(im,4)}, {zr}\n{mf} {zi}, {vr(N1,4)}, {vr(re,4)}, {zi}")
        o(f"{mf} {zr}, {vr(C1+4,4)}, {vr(re+4,4)}, {zr}\n{mf} {zi}, {vr(C1+4,4)}, {vr(im+4,4)}, {zi}")
        o(f"{mf} {zr}, {vr(S1+4,4)}, {vr(im+4,4)}, {zr}\n{mf} {zi}, {vr(N1+4,4)}, {vr(re+4,4)}, {zi}")
    twid(0); twid(1)
    pt(o, opt, "zmfma")
    o("s_nop 11")
    for n in range(16):
        part, r = n >> 3, n & 7
        o(f"v_cvt_pk_bf16_f32 v{200+n}, v{ZR[0]+16*part+r}, v{ZR[1]+16*part+r}\nds_write_b32 v12, v{200+n} offset:{(8*(r >> 2) + (r & 3))*512 + part*8192}")
    o(f"v_cvt_pk_bf16_f32 v12, v{ZR[0]+8}, v{ZR[1]+8}")
    o("L_p1_join:\ns_add_u32 s62, s68, 16384\nv_add_u32 v13, s62, v3")
    pt(o, opt, "prebar")
    o("s_waitcnt lgkmcnt(0)\ns_barrier")
    pt(o, opt, "bar")
    if FU: o(f"s_add_u32 s{sTAG}, s{sTAG}, 1")
    o("ds_read_b128 v[4:7], v13\nds_read_b128 v[8:11], v13 offset:1024")
    o(f"s_cmp_ge_u32 s{sW}, 4\ns_cbranch_scc1 L_p1_g1")
    for r in reads(0, 0, 4): o(r)
    o("s_waitcnt lgkmcnt(15)\ns_waitcnt lgkmcnt(0)\ns_barrier")
    mainloop(o, 4, opt)
    if FU:
        import p2
        p2.consumer(o, opt)
    else:
        stamp_out(o, opt, 0, sW, SWS, 4)
        o("s_endpgm")
    o("L_p1_g1:")
    for r in reads(0, 0, 3): o(r)
    o("s_waitcnt lgkmcnt(0)\ns_barrier")
    mainloop(o, 3, opt)
    if FU:
        p2.loader(o, opt)
    else:
        o(f"s_lshl_b32 s60, s2, 3\ns_add_u32 s60, s60, s{sW}\ns_cmp_lg_u32 s60, {255*8+7}\ns_cbranch_scc1 L_p1_notag\ns_mov_b32 s60, {hx(WS_TAG)}\nv_mov_b32 v4, 0\ns_mov_b64 exec, 1")
        o(f"buffer_load_dword v5, v4, s[{SWS}:{SWS+3}], s60 offen sc1\ns_waitcnt vmcnt(0)\nv_add_u32 v5, 1, v5\nbuffer_store_dword v5, v4, s[{SWS}:{SWS+3}], s60 offen sc1\ns_mov_b64 exec, -1\nL_p1_notag:")
        stamp_out(o, opt, 0, sW, SWS, 4)
    o("L_p1_end:\ns_endpgm")
    return o.text(), kd(name, 256)
```

```python
from common import *
import math
NST = 5
NK = 28
SWD, SWS, SOUT, SDBG = 28, 36, 24, 40
sW, sPB, sET, sKH_, sN, sST, sK1, sK2, sLB = 48, 49, 50, 51, 52, 53, 54, 55, 56
ACC = 192
SETS = [128, 160]
VHR, VWR, VHB, VWB = 116, 117, 121, 122

def c_reads(st, kap):
    b = SETS[st]
    def w(u, rd): return f"ds_read_b64_tr_b16 {vr(b+16+4*u+2*rd,2)}, v{VWR+u} offset:{kap*8192+rd*4096}"
    def h(p, rd): return f"ds_read_b64 {vr(b+4*p+2*rd,2)}, v{VHR} offset:{(2*kap+rd)*4096+p*512}"
    r = []
    for i in range(4): r += [w(i,0), w(i,1), h(i,0), h(i,1)]
    return r
def c_mfmas(st, zero=False):
    b = SETS[st]; r = []
    for (p, u) in [(0,0),(0,1),(1,1),(1,0),(2,0),(2,1),(2,2),(1,2),(0,2),(0,3),(1,3),(2,3),(3,3),(3,2),(3,1),(3,0)]:
        A = vr(ACC + (p*4+u)*4, 4)
        r.append(f"v_mfma_f32_16x16x32_bf16 {A}, {vr(b+16+4*u,4)}, {vr(b+4*p,4)}, {'0' if zero else A}")
    return r

ZFIRST = True
def fft(o):
    ZA, ZB, C1, S1, N1 = 8, 24, 40, 48, 56
    U, TW, C3 = 64, 128, 192
    ZP = 16512
    o(f"v_and_b32 v3, 31, v2\nv_lshrrev_b32 v4, 5, v2\nv_lshlrev_b32 v5, 2, v3\nv_add_u32 v5, v5, v4\nv_mul_u32_u24 v214, {ZP}, v5\nv_add_u32 v215, {2*ZP}, v214\nv_add_u32 v216, {128*ZP}, v214\nv_add_u32 v217, {130*ZP}, v214")
    o(f"s_lshl_b32 s61, s60, 4\ns_cmp_eq_u32 s60, 512\ns_cselect_b32 s61, 16384, s61\ns_add_u32 s61, s61, {hx(WS_Z)}\ns_add_u32 s62, s61, 8192")
    for part in range(2):
        for tile in range(2):
            for kap in range(2):
                o(f"buffer_load_dwordx4 {vr((ZA,ZB)[part]+(tile*2+kap)*4,4)}, v{214+tile*2+kap}, s[{SWS}:{SWS+3}], s{61+part} offen")
    if ZFIRST: o("s_barrier")
    o("v_cvt_f32_u32 v210, v3\nv_cvt_f32_u32 v211, v4\nv_and_b32 v212, 1, v2\nv_mul_u32_u24 v212, 0x8000, v212\nv_mul_u32_u24 v212, 0x10001, v212")
    o("v_mul_f32 v211, v210, v211")
    def base(scale): o(f"v_mul_f32 v213, {hx(f2u(4.0*scale))}, v211")
    def cs(dc, ds, cst, scale, tmp):
        o(f"v_fmamk_f32 v{tmp}, v210, {hx(f2u(cst*scale))}, v213\nv_fract_f32 v{tmp}, v{tmp}")
        o(f"v_cos_f32 v{dc}, v{tmp}\nv_sin_f32 v{ds}, v{tmp}")
    def slot(j): return 8*(j >> 2) + (j & 3)
    base(1/32.)
    for j in range(8): cs(U+j, U+8+j, slot(j), 1/32., 214 + (j & 3))
    o("s_nop 0")
    for kap in range(2):
        for i in range(2):
            o(f"v_cvt_pk_bf16_f32 v{C1+4*kap+i}, v{U+4*kap+2*i}, v{U+4*kap+2*i+1}\nv_cvt_pk_bf16_f32 v{S1+4*kap+i}, v{U+8+4*kap+2*i}, v{U+8+4*kap+2*i+1}")
        for i in range(2):
            o(f"v_xor_b32 v{C1+4*kap+2+i}, v{C1+4*kap+i}, v212\nv_xor_b32 v{S1+4*kap+2+i}, v{S1+4*kap+i}, v212")
    for i in range(8): o(f"v_xor_b32 v{N1+i}, 0x80008000, v{S1+i}")
    base(1/64.)
    for kp in range(2):
        for j in range(8): cs(U+j, U+8+j, 16*kp + slot(j), 1/64., 214 + (j & 3))
        o("s_nop 0")
        for i in range(4):
            o(f"v_cvt_pk_bf16_f32 v{C3+4*kp+i}, v{U+2*i}, v{U+2*i+1}\nv_cvt_pk_bf16_f32 v{C3+8+4*kp+i}, v{U+8+2*i}, v{U+8+2*i+1}")
    base(1/2048.)
    for tile in range(2):
        for r in range(16):
            c = 32*tile + 8*(r >> 2) + (r & 3); t = 214 + (r & 3)
            o(f"v_fmamk_f32 v{t}, v210, {hx(f2u(c/2048.))}, v213\nv_cos_f32 v{TW+tile*16+r}, v{t}\nv_sin_f32 v{TW+32+tile*16+r}, v{t}")
    o("s_waitcnt vmcnt(0)")
    o("s_cmp_lg_u32 s60, 512\ns_cbranch_scc1 L_fft_nz")
    for i in range(16): o(f"v_mov_b32 v{ZB+i}, 0")
    o("L_fft_nz:\ns_nop 1")
    mf = "v_mfma_f32_32x32x16_bf16"
    for kap in range(2):
        for tile in range(2):
            za = vr(ZA+(tile*2+kap)*4, 4); zb = vr(ZB+(tile*2+kap)*4, 4)
            re = vr(U+tile*16, 16); im = vr(U+32+tile*16, 16)
            c0r = re if kap else "0"; c0i = im if kap else "0"
            o(f"{mf} {re}, {za}, {vr(C1+4*kap,4)}, {c0r}\n{mf} {im}, {zb}, {vr(C1+4*kap,4)}, {c0i}")
            o(f"{mf} {re}, {zb}, {vr(S1+4*kap,4)}, {re}\n{mf} {im}, {za}, {vr(N1+4*kap,4)}, {im}")
    C3X = 220
    for part in range(2):
        for kp in range(2):
            for i in range(4): o(f"v_xor_b32 v{C3X+8*part+4*kp+i}, v{C3+8*part+4*kp+i}, v212")
    def c3(part, kp): return (C3 if kp < 2 else C3X) + 8*part + 4*(kp & 1)
    for i in range(0, 32, 2):
        t = 236 + 4*((i >> 1) & 1)
        ur, ui, c, s_ = vr(U+i,2), vr(U+32+i,2), vr(TW+i,2), vr(TW+32+i,2)
        o(f"v_pk_mul_f32 {vr(t,2)}, {ur}, {c}\nv_pk_mul_f32 {vr(t+2,2)}, {ui}, {c}")
        o(f"v_pk_fma_f32 {vr(t,2)}, {ui}, {s_}, {vr(t,2)}\nv_pk_fma_f32 {vr(t+2,2)}, {ur}, {s_}, {vr(t+2,2)} neg_lo:[1,0,0] neg_hi:[1,0,0]")
        o(f"v_cvt_pk_bf16_f32 v{8+i//2}, v{t}, v{t+1}\nv_cvt_pk_bf16_f32 v{24+i//2}, v{t+2}, v{t+3}")
    o("s_nop 1")
    first = True
    for kp in range(4):
        for part in range(2):
            Y = vr(U, 16)
            o(f"{mf} {Y}, {vr(c3(part,kp),4)}, {vr(8+16*part+4*kp,4)}, {'0' if first else Y}")
            first = False
            for i in range(4): o(f"v_xor_b32 v{TW+(kp*2+part)*4+i}, 0x80000000, v{c3(part,kp)+i}")
    o("s_nop 1")
    first = True
    for kp in range(4):
        for part in range(2):
            Y = vr(U+16, 16)
            o(f"{mf} {Y}, {vr(TW+(kp*2+part)*4,4)}, {vr(8+16*part+4*kp,4)}, {'0' if first else Y}")
            first = False
    o("v_lshlrev_b32 v5, 2, v3\nv_lshlrev_b32 v6, 9, v4\nv_add_u32 v5, v5, v6")
    o(f"s_lshl_b32 s61, s60, 13\ns_add_u32 s61, s61, {hx(WS_YT)}\ns_add_u32 s62, s61, 4096")
    for T in range(2):
        if T: o("s_nop 7")
        for r in range(16):
            o(f"buffer_store_dword v{U+16*T+r}, v5, s[{SWS}:{SWS+3}], s{61+T} offen offset:{(8*(r>>2)+(r&3))*128} sc1")

def fft_loads(o):
    ZA, ZB, C1, S1, N1 = 8, 24, 40, 48, 56
    U, TW, C3 = 64, 128, 192
    ZP = 16512
    o(f"v_and_b32 v3, 31, v2\nv_lshrrev_b32 v4, 5, v2\nv_lshlrev_b32 v5, 2, v3\nv_add_u32 v5, v5, v4\nv_mul_u32_u24 v244, {ZP}, v5\nv_add_u32 v245, {2*ZP}, v244\nv_add_u32 v246, {128*ZP}, v244\nv_add_u32 v247, {130*ZP}, v244")
    o(f"s_lshl_b32 s61, s60, 4\ns_cmp_eq_u32 s60, 512\ns_cselect_b32 s61, 16384, s61\ns_add_u32 s61, s61, {hx(WS_Z)}\ns_add_u32 s62, s61, 8192")
    for part in range(2):
        for tile in range(2):
            for kap in range(2):
                o(f"buffer_load_dwordx4 {vr((ZA,ZB)[part]+(tile*2+kap)*4,4)}, v{244+tile*2+kap}, s[{SWS}:{SWS+3}], s{61+part} offen sc1")

def fft_consts(o):
    ZA, ZB, C1, S1, N1 = 8, 24, 40, 48, 56
    U, TW, C3 = 64, 128, 192
    ZP = 16512
    o("v_and_b32 v3, 31, v2\nv_lshrrev_b32 v4, 5, v2")
    o("v_cvt_f32_u32 v210, v3\nv_cvt_f32_u32 v211, v4\nv_and_b32 v212, 1, v2\nv_mul_u32_u24 v212, 0x8000, v212\nv_mul_u32_u24 v212, 0x10001, v212")
    o("v_mul_f32 v211, v210, v211")
    def base(scale): o(f"v_mul_f32 v213, {hx(f2u(4.0*scale))}, v211")
    def cs(dc, ds, cst, scale, tmp):
        o(f"v_fmamk_f32 v{tmp}, v210, {hx(f2u(cst*scale))}, v213\nv_fract_f32 v{tmp}, v{tmp}")
        o(f"v_cos_f32 v{dc}, v{tmp}\nv_sin_f32 v{ds}, v{tmp}")
    def slot(j): return 8*(j >> 2) + (j & 3)
    base(1/32.)
    for j in range(8): cs(U+j, U+8+j, slot(j), 1/32., 214 + (j & 3))
    o("s_nop 0")
    for kap in range(2):
        for i in range(2):
            o(f"v_cvt_pk_bf16_f32 v{C1+4*kap+i}, v{U+4*kap+2*i}, v{U+4*kap+2*i+1}\nv_cvt_pk_bf16_f32 v{S1+4*kap+i}, v{U+8+4*kap+2*i}, v{U+8+4*kap+2*i+1}")
        for i in range(2):
            o(f"v_xor_b32 v{C1+4*kap+2+i}, v{C1+4*kap+i}, v212\nv_xor_b32 v{S1+4*kap+2+i}, v{S1+4*kap+i}, v212")
    for i in range(8): o(f"v_xor_b32 v{N1+i}, 0x80008000, v{S1+i}")
    base(1/64.)
    for kp in range(2):
        for j in range(8): cs(U+j, U+8+j, 16*kp + slot(j), 1/64., 214 + (j & 3))
        o("s_nop 0")
        for i in range(4):
            o(f"v_cvt_pk_bf16_f32 v{C3+4*kp+i}, v{U+2*i}, v{U+2*i+1}\nv_cvt_pk_bf16_f32 v{C3+8+4*kp+i}, v{U+8+2*i}, v{U+8+2*i+1}")
    base(1/2048.)
    for tile in range(2):
        for r in range(16):
            c = 32*tile + 8*(r >> 2) + (r & 3); t = 214 + (r & 3)
            o(f"v_fmamk_f32 v{t}, v210, {hx(f2u(c/2048.))}, v213\nv_cos_f32 v{TW+tile*16+r}, v{t}\nv_sin_f32 v{TW+32+tile*16+r}, v{t}")

def fft_chain(o):
    ZA, ZB, C1, S1, N1 = 8, 24, 40, 48, 56
    U, TW, C3 = 64, 128, 192
    ZP = 16512
    o("s_waitcnt vmcnt(0)")
    o("s_cmp_lg_u32 s60, 512\ns_cbranch_scc1 L_fft_nz")
    for i in range(16): o(f"v_mov_b32 v{ZB+i}, 0")
    o("L_fft_nz:\ns_nop 1")
    mf = "v_mfma_f32_32x32x16_bf16"
    for kap in range(2):
        for tile in range(2):
            za = vr(ZA+(tile*2+kap)*4, 4); zb = vr(ZB+(tile*2+kap)*4, 4)
            re = vr(U+tile*16, 16); im = vr(U+32+tile*16, 16)
            c0r = re if kap else "0"; c0i = im if kap else "0"
            o(f"{mf} {re}, {za}, {vr(C1+4*kap,4)}, {c0r}\n{mf} {im}, {zb}, {vr(C1+4*kap,4)}, {c0i}")
            o(f"{mf} {re}, {zb}, {vr(S1+4*kap,4)}, {re}\n{mf} {im}, {za}, {vr(N1+4*kap,4)}, {im}")
    C3X = 220
    for part in range(2):
        for kp in range(2):
            for i in range(4): o(f"v_xor_b32 v{C3X+8*part+4*kp+i}, v{C3+8*part+4*kp+i}, v212")
    def c3(part, kp): return (C3 if kp < 2 else C3X) + 8*part + 4*(kp & 1)
    for i in range(0, 32, 2):
        t = 236 + 4*((i >> 1) & 1)
        ur, ui, c, s_ = vr(U+i,2), vr(U+32+i,2), vr(TW+i,2), vr(TW+32+i,2)
        o(f"v_pk_mul_f32 {vr(t,2)}, {ur}, {c}\nv_pk_mul_f32 {vr(t+2,2)}, {ui}, {c}")
        o(f"v_pk_fma_f32 {vr(t,2)}, {ui}, {s_}, {vr(t,2)}\nv_pk_fma_f32 {vr(t+2,2)}, {ur}, {s_}, {vr(t+2,2)} neg_lo:[1,0,0] neg_hi:[1,0,0]")
        o(f"v_cvt_pk_bf16_f32 v{8+i//2}, v{t}, v{t+1}\nv_cvt_pk_bf16_f32 v{24+i//2}, v{t+2}, v{t+3}")
    o("s_nop 1")
    first = True
    for kp in range(4):
        for part in range(2):
            Y = vr(U, 16)
            o(f"{mf} {Y}, {vr(c3(part,kp),4)}, {vr(8+16*part+4*kp,4)}, {'0' if first else Y}")
            first = False
            for i in range(4): o(f"v_xor_b32 v{TW+(kp*2+part)*4+i}, 0x80000000, v{c3(part,kp)+i}")
    o("s_nop 1")
    first = True
    for kp in range(4):
        for part in range(2):
            Y = vr(U+16, 16)
            o(f"{mf} {Y}, {vr(TW+(kp*2+part)*4,4)}, {vr(8+16*part+4*kp,4)}, {'0' if first else Y}")
            first = False
    o("v_lshlrev_b32 v5, 2, v3\nv_lshlrev_b32 v6, 9, v4\nv_add_u32 v5, v5, v6")
    o(f"s_lshl_b32 s61, s60, 13\ns_add_u32 s61, s61, {hx(WS_YT)}\ns_add_u32 s62, s61, 4096")
    for T in range(2):
        if T: o("s_nop 7")
        for r in range(16):
            o(f"buffer_store_dword v{U+16*T+r}, v5, s[{SWS}:{SWS+3}], s{61+T} offen offset:{(8*(r>>2)+(r&3))*128} sc1")


def loader(o, opt):
    o(f"s_lshl_b32 s72, s49, 1\ns_lshr_b32 s73, s50, 4\ns_add_u32 s72, s72, s73\ns_lshl_b32 s72, s72, 4\ns_and_b32 s73, s50, 15\ns_add_u32 s72, s72, s73\ns_lshl_b32 s72, s72, 2\ns_add_u32 s72, s72, {hx(WS_HF)}")
    o(f"s_and_b32 s60, s2, 7\ns_lshr_b32 s61, s2, 3\ns_lshr_b32 s62, s60, 1\ns_lshl_b32 s62, s62, 2\ns_lshr_b32 s63, s61, 3\ns_add_u32 s{sPB}, s62, s63")
    o(f"s_and_b32 s{sET}, s61, 7\ns_and_b32 s{sKH_}, s60, 1")
    VH, VWD = 24, 26
    o(f"s_sub_u32 s60, s{sW}, 4\ns_mul_i32 s61, s{sKH_}, {NK*H_SS}\ns_mul_i32 s62, s{sPB}, {H_PS}\ns_add_u32 s61, s61, s62\ns_lshl_b32 s{sLB}, s60, 12\ns_add_u32 s61, s61, s{sLB}")
    o(f"v_lshlrev_b32 v3, 4, v2\nv_add_u32 v{VH}, s61, v3")
    pairs = opt.get("pairs", [[2*i, 2*i+1] for i in range(8)])
    T0 = sum(pr[0] << (4*i) for i, pr in enumerate(pairs)); T1 = sum(pr[1] << (4*i) for i, pr in enumerate(pairs))
    o(f"s_lshl_b32 s62, s{sET}, 2\ns_lshr_b32 s57, {hx(T0)}, s62\ns_and_b32 s57, s57, 15\ns_lshr_b32 s58, {hx(T1)}, s62\ns_and_b32 s58, s58, 15")
    o(f"v_lshrrev_b32 v4, 4, v2\nv_lshlrev_b32 v5, 11, v4\nv_lshlrev_b32 v4, 1, v4\nv_and_b32 v6, 15, v2\nv_xor_b32 v4, v4, v6")
    o(f"s_mul_i32 s61, s{sKH_}, {1792*2048}\ns_lshl_b32 s62, s60, 15\ns_add_u32 s61, s61, s62\nv_add_u32 v5, s61, v5")
    o(f"v_and_b32 v6, 7, v4\nv_lshlrev_b32 v6, 4, v6\nv_add_u32 v5, v5, v6\ns_lshl_b32 s61, s57, 7\ns_lshl_b32 s62, s58, 7\nv_mov_b32 v6, s61\nv_mov_b32 v7, s62\nv_cmp_gt_u32 vcc, 8, v4\ns_nop 1")
    o(f"v_cndmask_b32 v8, v7, v6, vcc\nv_cndmask_b32 v9, v6, v7, vcc\nv_add_u32 v{VWD}, v5, v8\nv_add_u32 v{VWD+1}, v5, v9\nv_add_u32 v{VWD+1}, {8192-1024}, v{VWD+1}")
    o(f"v_add_u32 v{VWD+2}, {2*(8192-1024)}, v{VWD}\nv_add_u32 v{VWD+3}, {2*(8192-1024)}, v{VWD+1}")
    o(f"s_mov_b32 s{sK1}, 0\ns_mov_b32 s{sK2}, 0\ns_mov_b32 s{sST}, 0\ns_mov_b32 s{sN}, 0")
    srd(o, SWD, 20, 21, F*D*2)
    srd(o, SOUT, 8, 9, S*D*2)
    def issue():
        if opt.get("noload") == 1:
            o(f"s_mov_b32 s{SWS+2}, 0\ns_mov_b32 s{SWD+2}, 0")
        if opt.get("noload") == 2:
            o(f"s_mov_b32 s{sK1}, 0\ns_mov_b32 s{sK2}, 0")
        o(f"s_add_u32 m0, s{sST}, s{sLB}\ns_nop 0")
        for j in range(4): o(f"buffer_load_dwordx4 v{VH}, s[{SWS}:{SWS+3}], s{sK1} offen offset:{j*1024} {opt.get('hld','sc1')} lds")
        o(f"s_add_u32 m0, m0, 16384\ns_nop 0")
        for j in range(4): o(f"buffer_load_dwordx4 v{VWD+j}, s[{SWD}:{SWD+3}], s{sK2} offen offset:{j*1024} lds")
        o(f"s_add_u32 s{sK1}, s{sK1}, {H_SS}\ns_add_u32 s{sK2}, s{sK2}, 131072")
        o(f"s_add_u32 s{sST}, s{sST}, 32768\ns_cmp_ge_u32 s{sST}, {NST*32768}\ns_cselect_b32 s{sST}, 0, s{sST}")
    o(f"s_lshr_b32 s73, s{sPB}, 1\ns_lshl_b32 s73, s73, 1\ns_add_u32 s73, s73, s{sKH_}\ns_lshl_b32 s73, s73, 6\ns_add_u32 s73, s73, {hx(WS_HF)}\nv_and_b32 v9, 15, v2\nv_lshlrev_b32 v9, 2, v9\nv_mov_b32 v10, s{sTAG}")
    stamp_out(o, opt, 0, sW, SWS, 4)
    o("s_waitcnt vmcnt(0)\ns_barrier")
    stamp(o, opt, 0)
    if opt.get("stamp"): o("s_mov_b64 s[84:85], 0\ns_mov_b64 s[86:87], 0\ns_mov_b64 s[88:89], 0\ns_mov_b64 s[90:91], 0\ns_mov_b64 s[92:93], 0\ns_mov_b64 s[94:95], 0\ns_sub_u32 s60, s48, 4")
    o(f"s_cmp_lg_u32 s{sW}, 4\ns_cbranch_scc1 L_f_nohf\ns_mov_b64 exec, 1\nbuffer_store_dword v10, v9, s[{SWS}:{SWS+3}], s72 offen sc1\ns_mov_b64 exec, -1\nL_f_nohf:")
    for st in range(NST):
        o(f"s_add_u32 m0, s{sLB}, {st*32768+16384}\ns_nop 0")
        for j in range(4): o(f"buffer_load_dwordx4 v{VWD+j}, s[{SWD}:{SWD+3}], s{sK2} offen offset:{j*1024} lds")
        o(f"s_add_u32 s{sK2}, s{sK2}, 131072")
    o(f"L_f_hpoll:\nbuffer_load_dword v10, v9, s[{SWS}:{SWS+3}], s73 offen sc1\ns_waitcnt vmcnt(0)\nv_cmp_ne_u32 vcc, s{sTAG}, v10\ns_cbranch_vccz L_f_hok\ns_sleep {opt.get('hsl', 16)}\ns_branch L_f_hpoll\nL_f_hok:")
    stamp(o, opt, 1)
    for st in range(NST):
        o(f"s_add_u32 m0, s{sLB}, {st*32768}\ns_nop 0")
        for j in range(4): o(f"buffer_load_dwordx4 v{VH}, s[{SWS}:{SWS+3}], s{sK1} offen offset:{j*1024} {opt.get('hld','sc1')} lds")
        o(f"s_add_u32 s{sK1}, s{sK1}, {H_SS}")
    o("s_waitcnt vmcnt(16)\ns_barrier")
    for cnt in (12, 16, 20):
        o(f"s_waitcnt vmcnt({cnt})\ns_barrier"); issue()
    o(f"s_mov_b32 s{sN}, 4\nL_p2_lloop:\ns_waitcnt vmcnt(24)\ns_barrier")
    issue()
    o(f"s_add_u32 s{sN}, s{sN}, 1\ns_cmp_lt_u32 s{sN}, 21\ns_cbranch_scc1 L_p2_lloop")
    o(f"s_lshl_b32 s63, s{sPB}, 7\ns_lshl_b32 s64, s60, 5\ns_add_u32 s63, s63, s64\nv_and_b32 v4, 15, v2\nv_add_u32 v4, s63, v4\nv_lshrrev_b32 v5, 4, v2")
    o(f"s_cmp_eq_u32 s{sKH_}, 0\ns_cselect_b32 s64, s57, s58\ns_lshl_b32 s64, s64, 6")
    o("v_lshlrev_b32 v6, 2, v4\nv_lshlrev_b32 v7, 15, v5\ns_cmp_ge_u32 s64, 512\ns_cbranch_scc1 L_p2_mir")
    o(f"v_add_u32 v12, v6, v7\nv_add_u32 v13, 64, v12\ns_lshl_b32 s66, s64, 13\ns_mov_b32 s67, 8192\ns_branch L_p2_mird\nL_p2_mir:")
    o(f"v_sub_u32 v12, 0x800, v4\nv_subrev_u32 v13, 16, v12\nv_and_b32 v12, 0x7ff, v12\nv_lshlrev_b32 v12, 2, v12\nv_lshlrev_b32 v13, 2, v13\nv_sub_u32 v7, 0x18000, v7\nv_add_u32 v12, v12, v7\nv_add_u32 v13, v13, v7")
    o(f"s_sub_u32 s66, 1012, s64\ns_lshl_b32 s66, s66, 13\ns_mov_b32 s67, -8192\nL_p2_mird:\ns_add_u32 s66, s66, {hx(WS_YT)}")
    o(f"s_sub_u32 s68, 961, s64\ns_cmp_ge_u32 s64, 512\ns_cselect_b32 s69, s68, s64\ns_lshl_b32 s69, s69, 2\ns_add_u32 s69, s69, {hx(WS_YF)}\nv_lshlrev_b32 v9, 2, v2")
    o(f"buffer_load_dword v10, v9, s[{SWS}:{SWS+3}], s69 offen sc1")
    for m in range(21, 24):
        o("s_waitcnt vmcnt(25)\ns_barrier")
        issue()
        if opt.get("noload"): o(f"s_mov_b32 s{SWS+2}, {hx(WS_SIZE)}")
    o("s_waitcnt vmcnt(24)\ns_barrier")
    o(f"L_p2_poll1:\nv_cmp_ne_u32 vcc, s{sTAG}, v10\ns_cbranch_vccz L_p2_poll1d\ns_sleep 1\nbuffer_load_dword v10, v9, s[{SWS}:{SWS+3}], s69 offen sc1\ns_waitcnt vmcnt(0)\ns_branch L_p2_poll1\nL_p2_poll1d:")
    o(f"s_mov_b32 s68, {hx(WS_G)}\nbuffer_load_dword v14, v6, s[{SWS}:{SWS+3}], s68 offen sc1\nbuffer_load_dword v15, v6, s[{SWS}:{SWS+3}], s68 offen offset:64 sc1\nv_mov_b32 v18, s{sTAG}")
    Y0 = 32
    for u in range(4):
        for r in range(4):
            o(f"s_mul_i32 s68, s67, {16*u+r}\ns_add_u32 s68, s68, s66")
            for a in range(2): o(f"buffer_load_dword v{Y0+(a*4+u)*4+r}, v{12+a}, s[{SWS}:{SWS+3}], s68 offen sc1")
    o("s_waitcnt vmcnt(50)\ns_barrier\ns_waitcnt vmcnt(42)\ns_barrier\ns_waitcnt vmcnt(34)\ns_barrier")
    o("v_lshlrev_b32 v6, 11, v4\nv_and_b32 v7, 16, v2\nv_lshlrev_b32 v7, 1, v7\nv_add_u32 v6, v6, v7\nv_lshrrev_b32 v7, 5, v2\nv_lshlrev_b32 v7, 4, v7\nv_add_u32 v6, v6, v7\ns_lshl_b32 s64, s64, 1\ns_add_u32 s65, s64, 32768")
    o(f"s_lshl_b32 s62, s60, 13\nv_lshlrev_b32 v3, 4, v2\nv_add_u32 v3, s62, v3\nv_add_u32 v8, 4096, v3")
    o("s_waitcnt vmcnt(0)")
    for a in range(2):
        o(f"v_sub_f32 v{16+a}, 1.0, v{14+a}\nv_cvt_pk_bf16_f32 v{16+a}, v{16+a}, v{16+a}\nv_lshlrev_b32 v{16+a}, 16, v{16+a}")
        for i in range(16): o(f"v_mul_f32 v{Y0+16*a+i}, v{14+a}, v{Y0+16*a+i}")
    O0, X0 = 64, 96
    o(f"s_mul_i32 s66, s2, {XB_S}\ns_add_u32 s66, s66, {hx(WS_XB)}\ns_mov_b32 s67, 0xfffff000")
    o("s_barrier")
    stamp(o, opt, 3)
    for i in range(8): o(f"ds_read_b128 {vr(O0+4*i,4)}, v3 offset:{i*1024}")
    o(f"L_p2_poll2a:\nbuffer_load_dword v19, v8, s[{SWS}:{SWS+3}], s66 offen offset:3072 sc1\ns_waitcnt vmcnt(0)\nv_xor_b32 v19, v19, v18\nv_and_b32 v19, 0xfff, v19\nv_cmp_ne_u32 vcc, 0, v19\ns_cbranch_vccz L_p2_poll2\ns_sleep 2\ns_branch L_p2_poll2a")
    o("L_p2_poll2:")
    for i in range(8): o(f"buffer_load_dwordx4 {vr(X0+4*i,4)}, v{3 if i < 4 else 8}, s[{SWS}:{SWS+3}], s66 offen offset:{(i&3)*1024} sc1")
    o("v_mov_b32 v19, 0")
    for i in range(8):
        o(f"s_waitcnt vmcnt({7-i})")
        for j in range(4): o(f"v_bitop3_b32 v19, v19, v{X0+4*i+j}, v18 bitop3:0xf6")
    o("v_and_b32 v19, 0xfff, v19\nv_cmp_ne_u32 vcc, 0, v19\ns_cbranch_vccnz L_p2_poll2")
    o("s_waitcnt lgkmcnt(0)")
    for i in range(32): o(f"v_and_b32 v{X0+i}, s67, v{X0+i}\nv_add_f32 v{X0+i}, v{X0+i}, v{O0+i}")
    for a in range(2):
        for i in range(16): o(f"v_fmac_f32 v{Y0+16*a+i}, v{16+a}, v{X0+16*a+i}")
        P = 128 + 8*a
        for u in range(4):
            d = P + 4*(u >> 1) + 2*(u & 1)
            o(f"v_cvt_pk_bf16_f32 v{d}, v{Y0+16*a+4*u}, v{Y0+16*a+4*u+1}\nv_cvt_pk_bf16_f32 v{d+1}, v{Y0+16*a+4*u+2}, v{Y0+16*a+4*u+3}")
        o(f"s_nop 1\nv_permlane16_swap_b32 v{P}, v{P+2}\nv_permlane16_swap_b32 v{P+1}, v{P+3}\nv_permlane16_swap_b32 v{P+4}, v{P+6}\nv_permlane16_swap_b32 v{P+5}, v{P+7}")
        o(f"buffer_store_dwordx4 {vr(P,4)}, v6, s[{SOUT}:{SOUT+3}], s{64+a} offen\nbuffer_store_dwordx4 {vr(P+4,4)}, v6, s[{SOUT}:{SOUT+3}], s{64+a} offen offset:64")
    stamp_out(o, opt, 1, sW, SWS, 5)
    o("s_endpgm")

def cons_pre(o, opt): pass

def consumer(o, opt):
    o(f"s_and_b32 s60, s2, 7\ns_lshr_b32 s61, s2, 3\ns_lshr_b32 s62, s60, 1\ns_lshl_b32 s62, s62, 2\ns_lshr_b32 s63, s61, 3\ns_add_u32 s{sPB}, s62, s63")
    o(f"s_and_b32 s{sET}, s61, 7\ns_and_b32 s{sKH_}, s60, 1")
    o(f"s_mov_b32 s{sCOL}, -1\ns_and_b32 s61, s{sET}, 3\ns_cmp_eq_u32 s61, 1\ns_cbranch_scc1 L_f_skip")
    if opt.get("tk3"): o(f"s_cmp_eq_u32 s{sW}, 3\ns_cbranch_scc1 L_f_skip")
    o(f"s_mov_b32 s63, {hx(WS_ZF)}\nv_lshlrev_b32 v5, 4, v2\nbuffer_load_dwordx4 v[8:11], v5, s[{SWS}:{SWS+3}], s63 offen sc1")
    fft_consts(o)
    stamp_out(o, opt, 0, sW, SWS, 4)
    o("s_waitcnt vmcnt(0)\ns_barrier")
    stamp(o, opt, 0)
    o("L_f_zchk:")
    o(f"v_xor_b32 v8, s{sTAG}, v8\nv_xor_b32 v9, s{sTAG}, v9\nv_xor_b32 v10, s{sTAG}, v10\nv_xor_b32 v11, s{sTAG}, v11\nv_or3_b32 v8, v8, v9, v10\nv_or_b32 v8, v8, v11\nv_cmp_ne_u32 vcc, 0, v8\ns_cbranch_vccz L_f_zok")
    o(f"s_sleep 8\nv_lshlrev_b32 v5, 4, v2\nbuffer_load_dwordx4 v[8:11], v5, s[{SWS}:{SWS+3}], s63 offen sc1\ns_waitcnt vmcnt(0)\ns_branch L_f_zchk\nL_f_zok:")
    o(f"v_mov_b32 v6, 0\nv_mov_b32 v7, 1\ns_lshl_b32 s60, s2, 3\ns_add_u32 s60, s60, s{sW}\ns_cmp_lg_u32 s60, 0\ns_cbranch_scc1 L_f_notag")
    o(f"s_mov_b32 s60, {hx(WS_TAG)}\nv_mov_b32 v8, s{sTAG}\ns_mov_b64 exec, 1\nbuffer_store_dword v8, v6, s[{SWS}:{SWS+3}], s60 offen sc1\ns_mov_b64 exec, -1\nL_f_notag:")
    o(f"s_and_b32 s61, s2, 7\ns_lshl_b32 s61, s61, 7\ns_add_u32 s61, s61, {hx(WS_TK)}\ns_mov_b64 exec, 1\nbuffer_atomic_add v7, v6, s[{SWS}:{SWS+3}], s61 offen sc0 sc1\ns_mov_b64 exec, -1")
    o(f"s_waitcnt vmcnt(0)\nv_readfirstlane_b32 s60, v7\ns_nop 3\ns_sub_u32 s60, s60, s{sTKB}\ns_and_b32 s61, s2, 7\ns_cmp_eq_u32 s61, 7\ns_cselect_b32 s62, 65, 64\ns_cmp_ge_u32 s60, s62\ns_cbranch_scc1 L_f_go")
    o(f"s_lshl_b32 s61, s61, 6\ns_add_u32 s60, s60, s61\ns_mov_b32 s{sCOL}, s60")
    fft_loads(o)
    fft_chain(o)
    o("s_branch L_f_go\nL_f_skip:")
    stamp_out(o, opt, 0, sW, SWS, 4)
    o("s_waitcnt vmcnt(0)\ns_barrier")
    stamp(o, opt, 0)
    o("L_f_go:")
    o(f"s_and_b32 s60, s{sW}, 1\ns_lshl_b32 s60, s60, 11\nv_lshlrev_b32 v3, 3, v2\nv_add_u32 v{VHB}, s60, v3")
    o(f"s_lshr_b32 s61, s{sW}, 1\ns_lshl_b32 s61, s61, 2\nv_lshrrev_b32 v4, 2, v2\nv_and_b32 v5, 7, v4\nv_xor_b32 v5, s61, v5\nv_lshlrev_b32 v4, 8, v4")
    o("v_and_b32 v6, 3, v2\nv_lshlrev_b32 v6, 3, v6\nv_add_u32 v4, v4, v6\nv_add_u32 v4, 0x4000, v4\nv_lshlrev_b32 v5, 5, v5")
    o(f"v_add_u32 v{VWB}, v4, v5")
    for u in range(1, 4): o(f"v_xor_b32 v{VWB+u}, {32*u}, v{VWB}")
    o(f"v_mov_b32 v{VHR}, v{VHB}")
    for u in range(4): o(f"v_mov_b32 v{VWR+u}, v{VWB+u}")
    o(f"s_mov_b32 s{sN}, 0\ns_mov_b32 s{sST}, 0")
    stamp(o, opt, 1)
    o("s_barrier")
    for r in c_reads(0, 0): o(r)
    rp = opt.get("rp", 2)
    for blk, q4 in enumerate((0, 0, 1, 2, 3)):
        if blk == 1: o("s_branch L_p2_cmid\n.p2align 6\nL_p2_cloop:")
        if blk == 2: o("L_p2_cmid:")
        half = q4 & 1
        M = c_mfmas(half, blk == 0); R = c_reads(half ^ 1, half ^ 1)
        gaps = [[] for _ in range(16)]
        for i in range(16): gaps[i // rp].append(R[i])
        def issued(g): return min(16, (g + 1) * rp)
        if q4 == 3:
            o("s_waitcnt lgkmcnt(0)\ns_cbranch_scc1 L_p2_nobar\ns_barrier\nL_p2_nobar:")
            gaps[15].append(f"s_add_u32 s{sN}, s{sN}, 1\ns_cmp_lt_u32 s{sN}, {NK//2}")
        elif q4 == 1:
            o("s_waitcnt lgkmcnt(0)\ns_barrier")
        else:
            o("s_waitcnt lgkmcnt(8)")
            gaps[2].insert(0, f"s_waitcnt lgkmcnt({min(15, 4 + issued(1))})")
            gaps[3].append(f"s_waitcnt lgkmcnt({min(15, issued(3))})")
        if half == 0:
            gaps[9].append(f"s_add_u32 s{sST}, s{sST}, 32768\ns_cmp_ge_u32 s{sST}, {NST*32768}")
            gaps[10].append(f"s_cselect_b32 s{sST}, 0, s{sST}")
            gaps[11].append(f"v_add_u32 v{VHR}, s{sST}, v{VHB}"); gaps[12].append(f"v_add_u32 v{VWR}, s{sST}, v{VWB}")
            gaps[13].append(f"v_add_u32 v{VWR+1}, s{sST}, v{VWB+1}"); gaps[14].append(f"v_add_u32 v{VWR+2}, s{sST}, v{VWB+2}")
            gaps[15].append(f"v_add_u32 v{VWR+3}, s{sST}, v{VWB+3}")
        if q4 == 1: gaps[12].append(f"s_cmp_eq_u32 s{sN}, 1\ns_cbranch_scc1 L_p2_drain\nL_p2_draind:")
        if q4 == 2: gaps[15].append(f"s_cmp_eq_u32 s{sN}, {NK//2-1}")
        for i in range(16):
            if not opt.get("nomfma"): o(M[i])
            for g in gaps[i]:
                if opt.get("nomfma") and g.startswith("ds_read"): continue
                o(g)
    o("s_cbranch_scc1 L_p2_cloop")
    stamp(o, opt, 2)
    o(f"s_waitcnt lgkmcnt(0)\ns_nop 7\ns_lshr_b32 s60, s{sW}, 1\ns_and_b32 s61, s{sW}, 1\ns_lshl_b32 s61, s61, 14\nv_lshlrev_b32 v3, 4, v2")
    o(f"s_cmp_eq_u32 s60, s{sKH_}\ns_cbranch_scc1 L_p2_own")
    o(f"s_xor_b32 s62, s2, 1\ns_mul_i32 s62, s62, {XB_S}\ns_add_u32 s62, s62, s61\ns_add_u32 s62, s62, {hx(WS_XB)}")
    o(f"s_movk_i32 s63, 0xfff\nv_mov_b32 v5, s{sTAG}")
    for i in range(16):
        for j in range(4): o(f"v_bfi_b32 v{ACC+4*i+j}, s63, v5, v{ACC+4*i+j}")
        o(f"buffer_store_dwordx4 {vr(ACC+4*i,4)}, v3, s[{SWS}:{SWS+3}], s62 offen offset:{(i&3)*1024} sc1")
        if (i & 3) == 3: o("s_add_u32 s62, s62, 4096")
    o("s_barrier\ns_branch L_p2_cend")
    o("L_p2_own:\nv_add_u32 v3, s61, v3")
    for i in range(16): o(f"ds_write_b128 v3, {vr(ACC+4*i,4)} offset:{i*1024}")
    o("s_waitcnt lgkmcnt(0)\ns_barrier")
    o("L_p2_cend:")
    stamp(o, opt, 3)
    stamp_out(o, opt, 1, sW, SWS, 5)
    o("s_endpgm")
    o(f"L_p2_drain:\ns_cmp_eq_u32 s{sCOL}, -1\ns_cbranch_scc1 L_p2_draind\ns_lshl_b32 s60, s{sCOL}, 2\ns_add_u32 s60, s60, {hx(WS_YF)}\nv_mov_b32 v3, 0\nv_mov_b32 v4, s{sTAG}\ns_waitcnt vmcnt(0)\ns_mov_b64 exec, 1\nbuffer_store_dword v4, v3, s[{SWS}:{SWS+3}], s60 offen sc1\ns_mov_b64 exec, -1\ns_branch L_p2_draind")

def gen_p2(opt):
    global ZFIRST
    ZFIRST = opt.get("zfirst", 0)
    o = Asm()
    name = "p2_kernel"
    o(f".globl {name}\n.p2align 8\n.type {name},@function\n{name}:")
    o("s_cmp_ge_u32 s2, 256\ns_cbranch_scc1 L_p2_end")
    stamp(o, opt, 0)
    if opt.get("stamp"): o("s_mov_b64 s[84:85], 0\ns_mov_b64 s[86:87], 0\ns_mov_b64 s[88:89], 0\ns_mov_b64 s[90:91], 0\ns_mov_b64 s[92:93], 0\ns_mov_b64 s[94:95], 0")
    o("s_load_dwordx2 s[4:5], s[0:1], 64\ns_load_dwordx4 s[8:11], s[0:1], 80\ns_load_dwordx2 s[12:13], s[0:1], 96")
    o(f"v_lshrrev_b32 v1, 6, v0\nv_and_b32 v2, 63, v0\ns_nop 0\nv_readfirstlane_b32 s{sW}, v1")
    o(f"s_and_b32 s60, s2, 7\ns_lshr_b32 s61, s2, 3\ns_lshr_b32 s62, s60, 1\ns_lshl_b32 s62, s62, 2\ns_lshr_b32 s63, s61, 3\ns_add_u32 s{sPB}, s62, s63")
    o(f"s_add_u32 s61, s61, {opt.get('etrot',0)}\ns_and_b32 s{sET}, s61, 7\ns_and_b32 s{sKH_}, s60, 1")
    o(f"s_cmp_lt_u32 s{sW}, 4\ns_cbranch_scc1 L_p2_cons")
    VH, VWD = 24, 26
    o(f"s_sub_u32 s60, s{sW}, 4\ns_mul_i32 s61, s{sKH_}, {NK*H_SS}\ns_mul_i32 s62, s{sPB}, {H_PS}\ns_add_u32 s61, s61, s62\ns_lshl_b32 s{sLB}, s60, 12\ns_add_u32 s61, s61, s{sLB}")
    o(f"v_lshlrev_b32 v3, 4, v2\nv_add_u32 v{VH}, s61, v3")
    pairs = opt.get("pairs", [[2*i, 2*i+1] for i in range(8)])
    T0 = sum(pr[0] << (4*i) for i, pr in enumerate(pairs)); T1 = sum(pr[1] << (4*i) for i, pr in enumerate(pairs))
    o(f"s_lshl_b32 s62, s{sET}, 2\ns_lshr_b32 s57, {hx(T0)}, s62\ns_and_b32 s57, s57, 15\ns_lshr_b32 s58, {hx(T1)}, s62\ns_and_b32 s58, s58, 15")
    o(f"v_lshrrev_b32 v4, 4, v2\nv_lshlrev_b32 v5, 11, v4\nv_lshlrev_b32 v4, 1, v4\nv_and_b32 v6, 15, v2\nv_xor_b32 v4, v4, v6")
    o(f"s_mul_i32 s61, s{sKH_}, {1792*2048}\ns_lshl_b32 s62, s60, 15\ns_add_u32 s61, s61, s62\nv_add_u32 v5, s61, v5")
    o(f"v_and_b32 v6, 7, v4\nv_lshlrev_b32 v6, 4, v6\nv_add_u32 v5, v5, v6\ns_lshl_b32 s61, s57, 7\ns_lshl_b32 s62, s58, 7\nv_mov_b32 v6, s61\nv_mov_b32 v7, s62\nv_cmp_gt_u32 vcc, 8, v4\ns_nop 1")
    o(f"v_cndmask_b32 v8, v7, v6, vcc\nv_cndmask_b32 v9, v6, v7, vcc\nv_add_u32 v{VWD}, v5, v8\nv_add_u32 v{VWD+1}, v5, v9\nv_add_u32 v{VWD+1}, {8192-1024}, v{VWD+1}")
    o(f"v_add_u32 v{VWD+2}, {2*(8192-1024)}, v{VWD}\nv_add_u32 v{VWD+3}, {2*(8192-1024)}, v{VWD+1}")
    o(f"s_mov_b32 s{sK1}, 0\ns_mov_b32 s{sK2}, 0\ns_mov_b32 s{sST}, 0\ns_mov_b32 s{sN}, 0")
    o("s_waitcnt lgkmcnt(0)")
    srd(o, SWD, 4, 5, F*D*2)
    srd(o, SWS, 12, 13, WS_SIZE)
    def issue():
        if opt.get("noload") == 1:
            o(f"s_mov_b32 s{SWS+2}, 0\ns_mov_b32 s{SWD+2}, 0")
        if opt.get("noload") == 2:
            o(f"s_mov_b32 s{sK1}, 0\ns_mov_b32 s{sK2}, 0")
        o(f"s_add_u32 m0, s{sST}, s{sLB}\ns_nop 0")
        for j in range(4): o(f"buffer_load_dwordx4 v{VH}, s[{SWS}:{SWS+3}], s{sK1} offen offset:{j*1024} {opt.get('hld','sc1')} lds")
        o(f"s_add_u32 m0, m0, 16384\ns_nop 0")
        for j in range(4): o(f"buffer_load_dwordx4 v{VWD+j}, s[{SWD}:{SWD+3}], s{sK2} offen offset:{j*1024} lds")
        o(f"s_add_u32 s{sK1}, s{sK1}, {H_SS}\ns_add_u32 s{sK2}, s{sK2}, 131072")
        o(f"s_add_u32 s{sST}, s{sST}, 32768\ns_cmp_ge_u32 s{sST}, {NST*32768}\ns_cselect_b32 s{sST}, 0, s{sST}")
    if ZFIRST: o("s_barrier")
    o("L_p2_lpro:"); issue()
    o(f"s_add_u32 s{sN}, s{sN}, 1\ns_cmp_lt_u32 s{sN}, {NST}\ns_cbranch_scc1 L_p2_lpro")
    srd(o, SOUT, 8, 9, S*D*2)
    srd(o, SDBG, 10, 11, 256)
    o(f"v_mov_b32 v9, 0\ns_mov_b32 s{sN}, 1\ns_waitcnt vmcnt(32)\ns_barrier\nL_p2_lloop:\ns_waitcnt vmcnt(24)\ns_barrier")
    issue()
    o(f"s_add_u32 s{sN}, s{sN}, 1\ns_cmp_lt_u32 s{sN}, 21\ns_cbranch_scc1 L_p2_lloop")
    if opt.get("noload"): o(f"s_mov_b32 s{SWS+2}, {hx(WS_SIZE)}")
    o(f"buffer_load_dword v10, v9, s[{SDBG}:{SDBG+3}], 0 offen sc1")
    o(f"s_lshl_b32 s63, s{sPB}, 7\ns_lshl_b32 s64, s60, 5\ns_add_u32 s63, s63, s64\nv_and_b32 v4, 15, v2\nv_add_u32 v4, s63, v4\nv_lshrrev_b32 v5, 4, v2")
    o(f"s_cmp_eq_u32 s{sKH_}, 0\ns_cselect_b32 s64, s57, s58\ns_lshl_b32 s64, s64, 6")
    o("v_lshlrev_b32 v6, 2, v4\nv_lshlrev_b32 v7, 15, v5\ns_cmp_ge_u32 s64, 512\ns_cbranch_scc1 L_p2_mir")
    o(f"v_add_u32 v12, v6, v7\nv_add_u32 v13, 64, v12\ns_lshl_b32 s66, s64, 13\ns_mov_b32 s67, 8192\ns_branch L_p2_mird\nL_p2_mir:")
    o(f"v_sub_u32 v12, 0x800, v4\nv_subrev_u32 v13, 16, v12\nv_and_b32 v12, 0x7ff, v12\nv_lshlrev_b32 v12, 2, v12\nv_lshlrev_b32 v13, 2, v13\nv_sub_u32 v7, 0x18000, v7\nv_add_u32 v12, v12, v7\nv_add_u32 v13, v13, v7")
    o(f"s_sub_u32 s66, 1012, s64\ns_lshl_b32 s66, s66, 13\ns_mov_b32 s67, -8192\nL_p2_mird:\ns_add_u32 s66, s66, {hx(WS_YT)}")
    for m in range(21, 24):
        o("s_waitcnt vmcnt(25)\ns_barrier")
        issue()
        if opt.get("noload"): o(f"s_mov_b32 s{SWS+2}, {hx(WS_SIZE)}")
    o("s_waitcnt vmcnt(24)\ns_barrier")
    o(f"L_p2_poll1:\nv_readfirstlane_b32 s68, v10\ns_nop 3\ns_cmp_ge_u32 s68, 256\ns_cbranch_scc1 L_p2_poll1d\ns_sleep 1\nbuffer_load_dword v10, v9, s[{SDBG}:{SDBG+3}], 0 offen sc1\ns_waitcnt vmcnt(0)\ns_branch L_p2_poll1\nL_p2_poll1d:")
    o(f"s_mov_b32 s68, {hx(WS_G)}\nbuffer_load_dword v14, v6, s[{SWS}:{SWS+3}], s68 offen\nbuffer_load_dword v15, v6, s[{SWS}:{SWS+3}], s68 offen offset:64")
    o(f"s_mov_b32 s68, {hx(WS_TAG)}\nbuffer_load_dword v18, v9, s[{SWS}:{SWS+3}], s68 offen")
    Y0 = 32
    for u in range(4):
        for r in range(4):
            o(f"s_mul_i32 s68, s67, {16*u+r}\ns_add_u32 s68, s68, s66")
            for a in range(2): o(f"buffer_load_dword v{Y0+(a*4+u)*4+r}, v{12+a}, s[{SWS}:{SWS+3}], s68 offen sc1")
    o("s_waitcnt vmcnt(51)\ns_barrier\ns_waitcnt vmcnt(43)\ns_barrier\ns_waitcnt vmcnt(35)\ns_barrier")
    o("v_lshlrev_b32 v6, 11, v4\nv_and_b32 v7, 16, v2\nv_lshlrev_b32 v7, 1, v7\nv_add_u32 v6, v6, v7\nv_lshrrev_b32 v7, 5, v2\nv_lshlrev_b32 v7, 4, v7\nv_add_u32 v6, v6, v7\ns_lshl_b32 s64, s64, 1\ns_add_u32 s65, s64, 32768")
    o(f"s_lshl_b32 s62, s60, 13\nv_lshlrev_b32 v3, 4, v2\nv_add_u32 v3, s62, v3\nv_add_u32 v8, 4096, v3")
    o("s_waitcnt vmcnt(0)")
    for a in range(2):
        o(f"v_sub_f32 v{16+a}, 1.0, v{14+a}\nv_cvt_pk_bf16_f32 v{16+a}, v{16+a}, v{16+a}\nv_lshlrev_b32 v{16+a}, 16, v{16+a}")
        for i in range(16): o(f"v_mul_f32 v{Y0+16*a+i}, v{14+a}, v{Y0+16*a+i}")
    O0, X0 = 64, 96
    o(f"s_mul_i32 s66, s2, {XB_S}\ns_add_u32 s66, s66, {hx(WS_XB)}\ns_mov_b32 s67, 0xfffff000")
    o("s_barrier")
    stamp(o, opt, 3)
    for i in range(8): o(f"ds_read_b128 {vr(O0+4*i,4)}, v3 offset:{i*1024}")
    o(f"L_p2_poll2a:\nbuffer_load_dword v19, v8, s[{SWS}:{SWS+3}], s66 offen offset:3072 sc1\ns_waitcnt vmcnt(0)\nv_xor_b32 v19, v19, v18\nv_and_b32 v19, 0xfff, v19\nv_cmp_ne_u32 vcc, 0, v19\ns_cbranch_vccz L_p2_poll2\ns_sleep 2\ns_branch L_p2_poll2a")
    o("L_p2_poll2:")
    for i in range(8): o(f"buffer_load_dwordx4 {vr(X0+4*i,4)}, v{3 if i < 4 else 8}, s[{SWS}:{SWS+3}], s66 offen offset:{(i&3)*1024} sc1")
    o("v_mov_b32 v19, 0")
    for i in range(8):
        o(f"s_waitcnt vmcnt({7-i})")
        for j in range(4): o(f"v_bitop3_b32 v19, v19, v{X0+4*i+j}, v18 bitop3:0xf6")
    o("v_and_b32 v19, 0xfff, v19\nv_cmp_ne_u32 vcc, 0, v19\ns_cbranch_vccnz L_p2_poll2")
    o("s_waitcnt lgkmcnt(0)")
    for i in range(32): o(f"v_and_b32 v{X0+i}, s67, v{X0+i}\nv_add_f32 v{X0+i}, v{X0+i}, v{O0+i}")
    for a in range(2):
        for i in range(16): o(f"v_fmac_f32 v{Y0+16*a+i}, v{16+a}, v{X0+16*a+i}")
        P = 128 + 8*a
        for u in range(4):
            d = P + 4*(u >> 1) + 2*(u & 1)
            o(f"v_cvt_pk_bf16_f32 v{d}, v{Y0+16*a+4*u}, v{Y0+16*a+4*u+1}\nv_cvt_pk_bf16_f32 v{d+1}, v{Y0+16*a+4*u+2}, v{Y0+16*a+4*u+3}")
        o(f"s_nop 1\nv_permlane16_swap_b32 v{P}, v{P+2}\nv_permlane16_swap_b32 v{P+1}, v{P+3}\nv_permlane16_swap_b32 v{P+4}, v{P+6}\nv_permlane16_swap_b32 v{P+5}, v{P+7}")
        o(f"buffer_store_dwordx4 {vr(P,4)}, v6, s[{SOUT}:{SOUT+3}], s{64+a} offen\nbuffer_store_dwordx4 {vr(P+4,4)}, v6, s[{SOUT}:{SOUT+3}], s{64+a} offen offset:64")
    stamp_out(o, opt, 1, sW, SWS, 5)
    if opt.get("dbgout"):
        o(f"s_lshl_b32 s60, s2, 3\ns_add_u32 s60, s60, s{sW}\ns_cmp_lg_u32 s60, {opt['dbgout']*8+4}\ns_cbranch_scc1 L_p2_end")
        o(f"v_lshlrev_b32 v3, 2, v2\ns_mov_b32 s61, {hx(WS_ST + (opt['dbgout']*8+4)*64)}\ns_mov_b64 exec, 0xff\nbuffer_load_dword v4, v3, s[{SWS}:{SWS+3}], s61 offen sc1\ns_waitcnt vmcnt(0)\nbuffer_store_dword v4, v3, s[{SDBG}:{SDBG+3}], 0 offen offset:4")
        o(f"s_mov_b64 exec, 1\nv_mov_b32 v4, s80\nv_mov_b32 v5, s82\nv_mov_b32 v6, s96\nv_mov_b32 v7, s98\nbuffer_store_dwordx4 v[4:7], v3, s[{SDBG}:{SDBG+3}], 0 offen offset:48")
        o(f"v_mov_b32 v4, s92\nv_mov_b32 v5, s94\nbuffer_store_dwordx2 v[4:5], v3, s[{SDBG}:{SDBG+3}], 0 offen offset:40")
    o("s_endpgm")
    o("L_p2_cons:\ns_waitcnt lgkmcnt(0)")
    srd(o, SWS, 12, 13, WS_SIZE)
    srd(o, SDBG, 10, 11, 256)
    if opt.get("fft3", 1):
        o(f"s_and_b32 s61, s{sET}, 3\ns_cmp_eq_u32 s61, 1\ns_cbranch_scc1 L_p2_nofft\ns_cmp_eq_u32 s{sW}, 3\ns_cbranch_scc1 L_p2_nofft")
        o(f"s_max_u32 s61, s61, 1\ns_sub_u32 s61, s61, 1\ns_lshr_b32 s62, s2, 5\ns_mul_i32 s62, s62, 3\ns_add_u32 s61, s61, s62\ns_and_b32 s62, s2, 7\ns_mul_i32 s62, s62, 24\ns_add_u32 s61, s61, s62")
        o(f"s_mul_i32 s60, s61, 3\ns_add_u32 s60, s60, s{sW}\ns_cmp_gt_u32 s60, 512\ns_cbranch_scc1 L_p2_nofft")
    else:
        o(f"s_lshl_b32 s60, s2, 1\ns_add_u32 s60, s60, s{sW}\ns_cmp_lt_u32 s{sW}, 2\ns_cbranch_scc1 L_p2_fft")
        o(f"s_mov_b32 s60, 512\ns_lshl_b32 s61, s2, 2\ns_add_u32 s61, s61, s{sW}\ns_cmp_lg_u32 s61, 2\ns_cbranch_scc1 L_p2_nofft")
    o("L_p2_fft:")
    if not opt.get("nofft"): fft(o)
    if ZFIRST: o("s_branch L_p2_nofft2\nL_p2_nofft:\ns_barrier\nL_p2_nofft2:")
    else: o("L_p2_nofft:")
    o(f"s_and_b32 s60, s{sW}, 1\ns_lshl_b32 s60, s60, 11\nv_lshlrev_b32 v3, 3, v2\nv_add_u32 v{VHB}, s60, v3")
    o(f"s_lshr_b32 s61, s{sW}, 1\ns_lshl_b32 s61, s61, 2\nv_lshrrev_b32 v4, 2, v2\nv_and_b32 v5, 7, v4\nv_xor_b32 v5, s61, v5\nv_lshlrev_b32 v4, 8, v4")
    o("v_and_b32 v6, 3, v2\nv_lshlrev_b32 v6, 3, v6\nv_add_u32 v4, v4, v6\nv_add_u32 v4, 0x4000, v4\nv_lshlrev_b32 v5, 5, v5")
    o(f"v_add_u32 v{VWB}, v4, v5")
    for u in range(1, 4): o(f"v_xor_b32 v{VWB+u}, {32*u}, v{VWB}")
    o(f"v_mov_b32 v{VHR}, v{VHB}")
    for u in range(4): o(f"v_mov_b32 v{VWR+u}, v{VWB+u}")
    o(f"s_mov_b32 s{sN}, 0\ns_mov_b32 s{sST}, 0\ns_cmp_eq_u32 s{sW}, 0\ns_cselect_b32 s{sK1}, 1, 99\nv_mov_b32 v3, 0\nv_mov_b32 v4, 1")
    o(f"s_mov_b32 s61, {hx(WS_TAG)}\nbuffer_load_dword v5, v3, s[{SWS}:{SWS+3}], s61 offen")
    stamp(o, opt, 1)
    o("s_barrier")
    for r in c_reads(0, 0): o(r)
    rp = opt.get("rp", 2)
    for blk, q4 in enumerate((0, 0, 1, 2, 3)):
        if blk == 1: o("s_branch L_p2_cmid\n.p2align 6\nL_p2_cloop:")
        if blk == 2: o("L_p2_cmid:")
        half = q4 & 1
        M = c_mfmas(half, blk == 0); R = c_reads(half ^ 1, half ^ 1)
        gaps = [[] for _ in range(16)]
        for i in range(16): gaps[i // rp].append(R[i])
        def issued(g): return min(16, (g + 1) * rp)
        if q4 == 3:
            o("s_waitcnt lgkmcnt(0)\ns_cbranch_scc1 L_p2_nobar\ns_barrier\nL_p2_nobar:")
            gaps[13].append(f"s_cmp_eq_u32 s{sN}, s{sK1}\ns_cbranch_scc1 L_p2_sig\nL_p2_sigd:")
            gaps[15].append(f"s_add_u32 s{sN}, s{sN}, 1\ns_cmp_lt_u32 s{sN}, {NK//2}")
        elif q4 == 1:
            o("s_waitcnt lgkmcnt(0)\ns_barrier")
        else:
            o("s_waitcnt lgkmcnt(8)")
            gaps[2].insert(0, f"s_waitcnt lgkmcnt({min(15, 4 + issued(1))})")
            gaps[3].append(f"s_waitcnt lgkmcnt({min(15, issued(3))})")
        if half == 0:
            gaps[9].append(f"s_add_u32 s{sST}, s{sST}, 32768\ns_cmp_ge_u32 s{sST}, {NST*32768}")
            gaps[10].append(f"s_cselect_b32 s{sST}, 0, s{sST}")
            gaps[11].append(f"v_add_u32 v{VHR}, s{sST}, v{VHB}"); gaps[12].append(f"v_add_u32 v{VWR}, s{sST}, v{VWB}")
            gaps[13].append(f"v_add_u32 v{VWR+1}, s{sST}, v{VWB+1}"); gaps[14].append(f"v_add_u32 v{VWR+2}, s{sST}, v{VWB+2}")
            gaps[15].append(f"v_add_u32 v{VWR+3}, s{sST}, v{VWB+3}")
        if q4 == 1: gaps[12].append(f"s_cmp_eq_u32 s{sN}, 1\ns_cbranch_scc1 L_p2_drain\nL_p2_draind:")
        if q4 == 2: gaps[15].append(f"s_cmp_eq_u32 s{sN}, {NK//2-1}")
        for i in range(16):
            if not opt.get("nomfma"): o(M[i])
            for g in gaps[i]:
                if opt.get("nomfma") and g.startswith("ds_read"): continue
                o(g)
    o("s_cbranch_scc1 L_p2_cloop")
    stamp(o, opt, 2)
    o(f"s_waitcnt lgkmcnt(0)\ns_nop 7\ns_lshr_b32 s60, s{sW}, 1\ns_and_b32 s61, s{sW}, 1\ns_lshl_b32 s61, s61, 14\nv_lshlrev_b32 v3, 4, v2")
    o(f"s_cmp_eq_u32 s60, s{sKH_}\ns_cbranch_scc1 L_p2_own")
    o(f"s_xor_b32 s62, s2, 1\ns_mul_i32 s62, s62, {XB_S}\ns_add_u32 s62, s62, s61\ns_add_u32 s62, s62, {hx(WS_XB)}")
    o("s_movk_i32 s63, 0xfff\ns_waitcnt vmcnt(0)")
    for i in range(16):
        for j in range(4): o(f"v_bfi_b32 v{ACC+4*i+j}, s63, v5, v{ACC+4*i+j}")
        o(f"buffer_store_dwordx4 {vr(ACC+4*i,4)}, v3, s[{SWS}:{SWS+3}], s62 offen offset:{(i&3)*1024} sc1")
        if (i & 3) == 3: o("s_add_u32 s62, s62, 4096")
    o("s_barrier\ns_branch L_p2_cend")
    o("L_p2_own:\nv_add_u32 v3, s61, v3")
    for i in range(16): o(f"ds_write_b128 v3, {vr(ACC+4*i,4)} offset:{i*1024}")
    o("s_waitcnt lgkmcnt(0)\ns_barrier")
    o("L_p2_cend:")
    stamp(o, opt, 3)
    stamp_out(o, opt, 1, sW, SWS, 5)
    o("L_p2_end:\ns_endpgm")
    o(f"L_p2_sig:\ns_mov_b64 exec, 1\nbuffer_atomic_add v4, v3, s[{SDBG}:{SDBG+3}], 0 offen sc1\ns_mov_b64 exec, -1\ns_branch L_p2_sigd\nL_p2_drain:\ns_waitcnt vmcnt(0)\ns_branch L_p2_draind")
    return o.text(), kd(name, 256)
```

```python
import sys, json
from common import *
from p1 import gen_p1
from p2 import gen_p2, NST
HDR = open("gated_mix__spectral_fnet__geglu_ffn__prompt.s.ref").read().split("; Override launch")[0]
def build(opt):
    if opt.get("fused"):
        t1, k1 = gen_p1(opt)
        s = HDR + ("; @launch kernel=gated_mix__spectral_fnet__geglu_ffn__prompt_kernel grid=(256,1,1) block=(512,1,1) lds=163840\n" if opt.get("aslist") else "; @launch grid=(256,1,1) block=(512,1,1) lds=163840\n")
        return s + '.amdgcn_target "amdgcn-amd-amdhsa--gfx950"\n.text\n' + t1 + '.section .rodata,"a"\n' + k1
    t1, k1 = gen_p1(opt); t2, k2 = gen_p2(opt)
    s = HDR
    s += "; @launch kernel=p1_kernel grid=(256,1,1) block=(512,1,1) lds=163840\n"
    s += f"; @launch kernel=p2_kernel grid=(256,1,1) block=(512,1,1) lds={NST*32768}\n"
    s += '.amdgcn_target "amdgcn-amd-amdhsa--gfx950"\n.text\n' + t1 + t2
    s += '.section .rodata,"a"\n' + k1 + k2
    return s
if __name__ == "__main__":
    out = sys.argv[1] if len(sys.argv) > 1 else "gated_mix__spectral_fnet__geglu_ffn__prompt.s"
    opt = json.loads(sys.argv[2]) if len(sys.argv) > 2 else {}
    open(out, "w").write(build(opt))
```
